```python
import torch

def _softmax(x, axis=-1):
    return torch.softmax(x, dim=axis)

def _gelu(x):
    return torch.nn.functional.gelu(x, approximate='tanh')

def _silu(x):
    return torch.nn.functional.silu(x)

def _sigmoid(x):
    return torch.sigmoid(x)

def _layernorm(x, axis=-1, eps=1e-05):
    m = x.mean(dim=axis, keepdim=True)
    v = x.var(dim=axis, keepdim=True, unbiased=False)
    return (x - m) / torch.sqrt(v + eps)

def _scatter_add(tgt, idx, src, axis=0):
    return tgt.clone().index_add_(axis, idx, src)

def _segment_sum(src, seg, n):
    out = torch.zeros((n,) + src.shape[1:], dtype=src.dtype)
    return out.index_add_(0, seg, src)

def _pad(x, pw):
    flat = tuple((v for pair in reversed(pw) for v in pair))
    return torch.nn.functional.pad(x, flat)
kernel_name = 'adaLN_cond__sliding_block_cached__swiglu_ffn__prompt'

def setup_inputs():

    _w = lambda a: (lambda t: t.to(torch.bfloat16) if t.is_floating_point() else t)(torch.as_tensor(a))

    def _A_setup():
        B, Sq, D = (1, 2048, 576)
        Hq, Hkv, Sk, Dh = (32, 16, 2048, 128)
        assert Hq % Hkv == 0, (Hq, Hkv)
        return {'x': _w((lambda *s: torch.randn(*s, dtype=torch.bfloat16) * 0.05)(B, Sq, D)), 'k_cache': _w((lambda *s: torch.randn(*s, dtype=torch.bfloat16) * 3.2)(B, Hkv, Sk, Dh)), 'v_cache': _w((lambda *s: torch.randn(*s, dtype=torch.bfloat16) * 0.4)(B, Hkv, Sk, Dh)), 'wq': _w((lambda *s: torch.randn(*s, dtype=torch.bfloat16) * 3.2)(D, Hq * Dh) * D ** (-0.5)), 'wo': _w((lambda *s: torch.randn(*s, dtype=torch.bfloat16) * 0.4)(Hq * Dh, D) * (Hq * Dh) ** (-0.5))}
    _A_in = _A_setup()

    def _B_setup():
        B, S, D, F = (1, 2048, 576, 4608)
        return {'x': _w((lambda *s: torch.randn(*s, dtype=torch.bfloat16) * 0.05)(B, S, D)), 'w_gate': _w((lambda *s: torch.randn(*s, dtype=torch.bfloat16) * 0.05)(D, F)), 'w_up': _w((lambda *s: torch.randn(*s, dtype=torch.bfloat16) * 0.05)(D, F)), 'w_down': _w((lambda *s: torch.randn(*s, dtype=torch.bfloat16) * 0.05)(F, D))}
    _B_in = _B_setup()
    return {'A_x': _A_in['x'], 'A_k_cache': _A_in['k_cache'], 'A_v_cache': _A_in['v_cache'], 'A_wq': _A_in['wq'], 'A_wo': _A_in['wo'], 'B_x': _B_in['x'], 'B_w_gate': _B_in['w_gate'], 'B_w_up': _B_in['w_up'], 'B_w_down': _B_in['w_down'], 'c': _w((lambda *s: torch.randn(*s, dtype=torch.bfloat16) * 0.1)(1, 576) * 8.0), 'w_mod': _w((lambda *s: torch.randn(*s, dtype=torch.bfloat16) * 0.1)(576, 6 * 576) * 576 ** (-0.5) * 8.0)}

def reference(A_x, A_k_cache, A_v_cache, A_wq, A_wo, B_x, B_w_gate, B_w_up, B_w_down, c, w_mod):

    def _A_ref(x, k_cache, v_cache, wq, wo):
        B, Sq, D = x.shape
        Hq, Dh = (32, 128)
        Hkv, Sk = (k_cache.shape[1], k_cache.shape[2])
        W = min(4096, max(256, Sk // 4))
        rep = Hq // Hkv
        q = (lambda x, *d: x.permute(*d))((x @ wq).reshape(B, Sq, Hq, Dh), 0, 2, 1, 3)
        k = (lambda x, n, axis: torch.repeat_interleave(x, n, dim=axis))(k_cache[:, :, Sk - W:, :], rep, axis=1)
        v = (lambda x, n, axis: torch.repeat_interleave(x, n, dim=axis))(v_cache[:, :, Sk - W:, :], rep, axis=1)
        scores = torch.einsum('bhqd,bhkd->bhqk', q, k) * Dh ** (-0.5)
        p = _softmax(scores, axis=-1)
        o = torch.einsum('bhqk,bhkd->bhqd', p, v)
        return (lambda x, *d: x.permute(*d))(o, 0, 2, 1, 3).reshape(B, Sq, Hq * Dh) @ wo

    def _B_ref(x, w_gate, w_up, w_down):
        g = _silu(x @ w_gate)
        u = x @ w_up
        return g * u @ w_down
    x = A_x
    mod = (_silu(c) @ w_mod).reshape(c.shape[0], 6, 1, -1)
    sa, ca, ga, sb, cb, gb = (mod[:, 0].clone(), mod[:, 1].clone(), mod[:, 2].clone(), mod[:, 3].clone(), mod[:, 4].clone(), mod[:, 5].clone())
    h = _layernorm(x, axis=-1) * (1 + ca) + sa
    x = x + ga * _A_ref(h, A_k_cache, A_v_cache, A_wq, A_wo)
    h = _layernorm(x, axis=-1) * (1 + cb) + sb
    x = x + gb * _B_ref(h, B_w_gate, B_w_up, B_w_down)
    return x
```

```python
import re

TRANS = ("v_exp_f32", "v_log_f32", "v_rcp_f32", "v_rsq_f32", "v_sqrt_f32", "v_sin_f32", "v_cos_f32")

def regs_of(op):
    op = op.strip()
    neg = re.match(r"^-?(abs\()?(.*?)\)?$", op)
    o = op.lstrip("-")
    if o.startswith("abs(") or o.startswith("|"):
        o = o[4:-1] if o.startswith("abs(") else o[1:-1]
    m = re.match(r"^([vsa])(\d+)$", o)
    if m: return [(m.group(1), int(m.group(2)))]
    m = re.match(r"^([vsa])\[(\d+):(\d+)\]$", o)
    if m: return [(m.group(1), i) for i in range(int(m.group(2)), int(m.group(3)) + 1)]
    if o in ("vcc", "exec", "m0", "scc"): return [("x", o)]
    if o in ("vcc_lo", "vcc_hi"): return [("x", "vcc")]
    return []

def split_ops(s):
    out, depth, cur = [], 0, ""
    for ch in s:
        if ch in "[(": depth += 1
        if ch in "])": depth -= 1
        if ch == "," and depth == 0:
            out.append(cur.strip()); cur = ""
        else: cur += ch
    if cur.strip(): out.append(cur.strip())
    return out

class Emit:
    def __init__(self, name):
        self.name = name
        self.lines = []
        self.pos = 0
        self.vm_iss = 0; self.vm_done = 0
        self.lg_iss = 0; self.lg_done = 0
        self.pend = {}
        self.w_valu = {}
        self.w_trans = {}
        self.w_mfma = {}
        self.r_mfma_c = {}
        self.st_data = {}
        self.w_sgpr_valu = {}
        self.m0_w = -100
        self.smem_pending = False
        self.maxv = 0; self.maxs = 0
        self.n_mfma = 0
    def raw(self, text, states=1):
        self.lines.append("    " + text); self.pos += states
    def comment(self, t): self.lines.append("    ; " + t)
    def label(self, l): self.lines.append(l + ":")
    def nop(self, n):
        while n > 0:
            k = min(n, 16); self.raw("s_nop %d" % (k - 1), k); n -= k
    def need(self, since_pos, states):
        have = self.pos - since_pos - 1
        if have < states: self.nop(states - have)
    def wait_vm_seq(self, seq):
        if seq <= self.vm_done: return
        n = self.vm_iss - seq
        assert n <= 63, n
        self.raw("s_waitcnt vmcnt(%d)" % n); self.vm_done = seq
    def wait_lg_seq(self, seq):
        if seq <= self.lg_done: return
        n = self.lg_iss - seq
        if self.smem_pending: n = 0
        if n > 15: n = 15;
        self.raw("s_waitcnt lgkmcnt(%d)" % n); self.lg_done = self.lg_iss - n
        if n == 0: self.smem_pending = False
        assert self.lg_done >= seq
    def wait_all_lg(self):
        if self.lg_done < self.lg_iss or self.smem_pending:
            self.raw("s_waitcnt lgkmcnt(0)"); self.lg_done = self.lg_iss; self.smem_pending = False
    def wait_all_vm(self): self.wait_vm_seq(self.vm_iss)
    def _touch(self, regs):
        vm = lg = 0
        for r in regs:
            p = self.pend.get(r)
            if p:
                if p[0] == "vm": vm = max(vm, p[1])
                else: lg = max(lg, p[1])
        if vm > self.vm_done and lg > self.lg_done and not self.smem_pending and self.lg_iss - lg <= 15:
            self.raw("s_waitcnt vmcnt(%d) lgkmcnt(%d)" % (self.vm_iss - vm, self.lg_iss - lg))
            self.vm_done = vm; self.lg_done = lg
        if vm: self.wait_vm_seq(vm)
        if lg: self.wait_lg_seq(lg)
        for r in regs: self.pend.pop(r, None)
    def _track(self, regs):
        for t, n in regs:
            if t == "v": self.maxv = max(self.maxv, n + 1)
            if t == "s": self.maxs = max(self.maxs, n + 1)
    def I(self, text):
        text = text.strip()
        mn, _, rest = text.partition(" ")
        ops = split_ops(rest)
        mods = ""
        if ops:
            last = ops[-1].split()
            ops[-1] = last[0]; mods = " ".join(last[1:])
        R = [regs_of(o) for o in ops]
        for r in R: self._track(r)
        flat = lambda L: [x for r in L for x in r]
        if mn.startswith("v_mfma"):
            D, A, B, C = R[0], R[1], R[2], R[3]
            self._touch(D + A + B + C)
            for r in A + B + C:
                if r in self.w_valu: self.need(self.w_valu[r], 2)
            for r in A + B:
                if r in self.w_mfma: self.need(self.w_mfma[r][0], 12)
            for r in C:
                if r in self.w_mfma:
                    p, db, ds = self.w_mfma[r]
                    if not (db == C[0] and ds == len(C)): self.need(p, 10)
            for r in D:
                if r in self.w_mfma and r not in C:
                    self.need(self.w_mfma[r][0], 12)
            self.raw(text); p = self.pos - 1
            for r in D: self.w_mfma[r] = (p, D[0], len(D)); self.w_valu.pop(r, None); self.w_trans.pop(r, None)
            for r in C: self.r_mfma_c[r] = p
            self.n_mfma += 1
            return
        if mn.startswith("ds_read") or mn.startswith("ds_bpermute") or mn.startswith("ds_swizzle"):
            D = R[0]; S = flat(R[1:])
            self._touch(D + S)
            for r in D + S:
                if r in self.w_mfma: self.need(self.w_mfma[r][0], 12)
            for r in D:
                if r in self.r_mfma_c: self.need(self.r_mfma_c[r], 7)
            self.raw(text); self.lg_iss += 1
            for r in D: self.pend[r] = ("lg", self.lg_iss); self.w_valu.pop(r, None); self.w_mfma.pop(r, None); self.w_trans.pop(r, None)
            return self.lg_iss
        if mn.startswith("ds_write") or mn.startswith("ds_add"):
            S = flat(R)
            self._touch(S)
            for r in S:
                if r in self.w_mfma: self.need(self.w_mfma[r][0], 12)
            self.raw(text); self.lg_iss += 1
            return self.lg_iss
        if mn.startswith("buffer_load") or mn.startswith("global_load"):
            islds = " lds" in (" " + mods) or "_lds_" in mn
            if islds: D = []; S = flat(R)
            else: D = R[0]; S = flat(R[1:])
            self._touch(D + S)
            for r in D + S:
                if r in self.w_mfma: self.need(self.w_mfma[r][0], 12)
                if r in self.w_sgpr_valu: self.need(self.w_sgpr_valu[r], 5)
            for r in D:
                if r in self.st_data: self.need(self.st_data[r], 2)
                if r in self.r_mfma_c: self.need(self.r_mfma_c[r], 7)
            if islds: self.need(self.m0_w, 1)
            self.raw(text); self.vm_iss += 1
            for r in D: self.pend[r] = ("vm", self.vm_iss); self.w_valu.pop(r, None); self.w_mfma.pop(r, None); self.w_trans.pop(r, None)
            return self.vm_iss
        if mn.startswith("buffer_store") or mn.startswith("global_store") or mn.startswith("buffer_atomic") or mn.startswith("global_atomic"):
            S = flat(R)
            self._touch(S)
            for r in S:
                if r in self.w_mfma: self.need(self.w_mfma[r][0], 12)
                if r in self.w_sgpr_valu: self.need(self.w_sgpr_valu[r], 5)
            self.raw(text); self.vm_iss += 1
            for r in R[0] + (R[1] if mn.startswith("global") else []): self.st_data[r] = self.pos - 1
            if "atomic" in mn and "sc0" in mods:
                for r in R[0]: self.pend[r] = ("vm", self.vm_iss)
            return self.vm_iss
        if mn.startswith("s_load") or mn.startswith("s_memtime") or mn.startswith("s_memrealtime"):
            self.raw(text); self.lg_iss += 1; self.smem_pending = True
            for r in R[0]: self.pend[r] = ("lg", self.lg_iss)
            return
        if mn.startswith("s_"):
            S = flat(R)
            self._touch(S)
            for r in S:
                if r in self.w_sgpr_valu and not mn.startswith("s_cbranch"): self.need(self.w_sgpr_valu[r], 1)
            self.raw(text)
            if R and ("x", "m0") in R[0] and not mn.startswith("s_cmp"): self.m0_w = self.pos - 1
            if R and not mn.startswith("s_cmp") and not mn.startswith("s_cbranch"):
                for r in R[0]: self.w_sgpr_valu.pop(r, None)
            return
        if mn.startswith("v_"):
            isperm = mn.startswith("v_permlane")
            iscmp = mn.startswith("v_cmp")
            isrl = mn.startswith("v_readfirstlane") or mn.startswith("v_readlane")
            isdpp = "dpp" in mn or any(k in mods for k in ("row_", "quad_perm", "wave_"))
            D = list(R[0]); S = flat(R[1:])
            if mn.startswith("v_add_co") or mn.startswith("v_addc_co") or mn.startswith("v_sub_co"):
                D = R[0] + R[1]; S = flat(R[2:])
            if isperm: D = R[0] + R[1]; S = R[0] + R[1]
            if mn.startswith("v_fmac") or mn.startswith("v_pk_fmac") or isdpp: S = S + R[0]
            if mn.startswith("v_cndmask") and len(R) == 3: S = S + [("x", "vcc")]
            self._touch(D + S)
            for r in D + S:
                if r in self.w_mfma: self.need(self.w_mfma[r][0], 12)
            for r in D:
                if r in self.r_mfma_c: self.need(self.r_mfma_c[r], 7)
                if r in self.st_data: self.need(self.st_data[r], 2)
            base = mn.replace("_e32", "").replace("_e64", "")
            for r in S:
                if r in self.w_trans and base not in TRANS: self.need(self.w_trans[r], 1)
                if (isperm or isdpp) and r in self.w_valu: self.need(self.w_valu[r], 2)
                if isrl and r in self.w_valu: self.need(self.w_valu[r], 1)
                if r in self.w_sgpr_valu: self.need(self.w_sgpr_valu[r], 2)
            self.raw(text); p = self.pos - 1
            for r in D:
                if r[0] in ("v", "a"):
                    self.w_valu[r] = p; self.w_mfma.pop(r, None)
                    if base in TRANS: self.w_trans[r] = p
                    else: self.w_trans.pop(r, None)
                else:
                    self.w_sgpr_valu[r] = p
            return
        raise ValueError("unknown instr " + text)
    def barrier(self):
        self.raw("s_barrier")
    def fence_hazards(self):
        self.nop(16)
    def text(self): return "\n".join(self.lines)

def kernel_text(em, vgpr=None, sgpr=None, wg_y=False):
    v = vgpr or em.maxv
    v = (v + 7) // 8 * 8
    s = sgpr or max(em.maxs, 16)
    body = f""".globl {em.name}
.p2align 8
.type {em.name},@function
{em.name}:
{em.text()}
"""
    desc = f""".amdhsa_kernel {em.name}
  .amdhsa_next_free_vgpr {v}
  .amdhsa_next_free_sgpr {s}
  .amdhsa_accum_offset {v}
  .amdhsa_group_segment_fixed_size 0
  .amdhsa_kernarg_size 112
  .amdhsa_user_sgpr_count 2
  .amdhsa_user_sgpr_kernarg_segment_ptr 1
  .amdhsa_system_sgpr_workgroup_id_x 1
  .amdhsa_float_denorm_mode_32 3
  .amdhsa_float_denorm_mode_16_64 3
.end_amdhsa_kernel
"""
    return body, desc
```

```python
from gen_common import *
LOG2E = 1.4426950408889634

class Addr:
    def __init__(self, reg): self.reg = reg; self.base = 0
    def off(self, em, absoff, span=0):
        rel = absoff - self.base
        if rel < 0 or rel + span > 65535:
            nb = (absoff // 32768) * 32768
            d = nb - self.base
            if d > 0: em.I("v_add_u32 v%d, 0x%x, v%d" % (self.reg, d, self.reg))
            else: em.I("v_subrev_u32 v%d, 0x%x, v%d" % (self.reg, -d, self.reg))
            self.base = nb; rel = absoff - nb
        return rel

class Op:
    def __init__(self, reads, B, D, C, chunk, pre=None, post=None, nfill=0):
        self.reads = reads
        self.B = B; self.D = D; self.C = C; self.chunk = chunk
        self.pre = pre or []; self.post = post or []
        self.nfill = nfill
        self.noprefetch_before = False

class Pipe:
    def __init__(self, em, af_base, R):
        self.em = em; self.af = af_base; self.R = R
        self.ops = []; self.fill = []
        self.marks = set()
    def add(self, op): self.ops.append(op)
    def issue_reads(self, i):
        op = self.ops[i]; em = self.em
        d = self.af + 4 * (i % self.R)
        for kind, a, off in op.reads:
            rel = a.off(em, off)
            if kind == "tr":
                em.I("ds_read_b64_tr_b16 %s, v%d offset:%d" % (vr(d, 2), a.reg, rel)); d += 2
            else:
                em.I("ds_read_b128 %s, v%d offset:%d" % (vr(d, 4), a.reg, rel)); d += 4
    def run_fill(self, n):
        while n > 0 and self.fill:
            f = self.fill.pop(0)
            if isinstance(f, tuple): self.marks.add(f[1]); continue
            if callable(f): f()
            else: self.em.I(f)
            n -= 1
    def flush_fill(self): self.run_fill(10 ** 9)
    def ensure(self, mark):
        while mark not in self.marks:
            assert self.fill, mark
            if isinstance(self.fill[0], tuple): self.marks.add(self.fill.pop(0)[1])
            else: self.run_fill(1)
    def run(self):
        em = self.em; n = len(self.ops); nxt = 0
        for i, op in enumerate(self.ops):
            for a in op.pre: a()
            while nxt < min(n, i + self.R):
                if self.ops[nxt].noprefetch_before and nxt > i: break
                self.issue_reads(nxt); nxt += 1
            d = self.af + 4 * (i % self.R)
            C = op.C if isinstance(op.C, str) else vr(op.C, 16)
            em.I("v_mfma_f32_32x32x16_bf16 %s, %s, %s, %s" % (vr(op.D, 16), vr(d, 4), vr(op.B, 4), C))
            if nxt < n and nxt == i + self.R and not self.ops[nxt].noprefetch_before:
                self.issue_reads(nxt); nxt += 1
            self.run_fill(op.nfill)
            for a in op.post: a()

def lane_decomp(em, L, H, G1, R, C, SW):
    em.I("v_and_b32 v%d, 63, v0" % L)
    em.I("v_lshrrev_b32 v%d, 5, v%d" % (H, L))
    em.I("v_bfe_u32 v%d, v%d, 4, 1" % (G1, L))
    em.I("v_bfe_u32 v%d, v%d, 2, 2" % (R, L))
    em.I("v_and_b32 v%d, 3, v%d" % (C, L))
    em.I("v_and_b32 v%d, 1, v%d" % (SW, L))
    em.I("v_lshlrev_b32 v%d, 1, v%d" % (SW, SW))
    em.I("v_bfe_u32 v%d, v%d, 1, 1" % (C + 0, L))
    em.I("v_or_b32 v%d, v%d, v%d" % (SW, SW, C))
    em.I("v_and_b32 v%d, 3, v%d" % (C, L))

def wg_decode(em):
    em.I("v_lshrrev_b32 v1, 6, v0")
    em.I("v_readfirstlane_b32 s32, v1")
    em.I("s_and_b32 s33, s2, 7")
    em.I("s_lshl_b32 s33, s33, 1")
    em.I("s_bfe_u32 s34, s2, 0x10003")
    em.I("s_add_u32 s33, s33, s34")
    em.I("s_lshr_b32 s34, s2, 4")
    em.I("s_and_b32 s35, s32, 3")
    em.I("s_lshr_b32 s36, s32, 2")
    em.I("s_lshl_b32 s37, s34, 2")
    em.I("s_add_u32 s37, s37, s35")

THR = float(2 ** 30)

def gen_attn():
    em = Emit("attn_kernel")
    I = em.I
    I("s_cmp_ge_u32 s2, 256")
    I("s_cbranch_scc1 L_attn_end")
    load_ptr(em, 40, "wq"); load_ptr(em, 42, "k"); load_ptr(em, 44, "v"); load_ptr(em, 46, "wo"); load_ptr(em, 48, "ws")
    wg_decode(em)
    S_WQ, S_K, S_V, S_WO, S_H, S_P = 8, 12, 16, 20, 24, 28
    I("s_lshl_b32 s50, s33, 9")
    make_srd(em, S_WQ, 40, 576 * 8192, off_sgpr=50)
    I("s_lshl_b32 s50, s33, 19")
    make_srd(em, S_K, 42, 16 * 524288, off_const=1536 * 256, off_sgpr=50)
    make_srd(em, S_V, 44, 16 * 524288, off_const=1536 * 256, off_sgpr=50)
    I("s_mul_i32 s50, s33, %d" % (256 * 1152))
    make_srd(em, S_WO, 46, 4096 * 1152, off_sgpr=50)
    I("s_mul_i32 s50, s37, 36864")
    make_srd(em, S_H, 48, WS_H + FRAG, off_const=WS_H, off_sgpr=50)
    I("s_mul_i32 s51, s33, 0x%x" % FRAG)
    I("s_add_u32 s50, s50, s51")
    make_srd(em, S_P, 48, WS_END, off_const=WS_P, off_sgpr=50)
    I("s_lshl_b32 s38, s32, 12")
    I("s_lshl_b32 s39, s32, 10")
    I("s_mov_b32 s52, %s" % f32(THR))
    HOFF, VQ, VK, VV, VWO = 1, 2, 3, 4, 5
    AQr, AVr, AKr, AOo, AOp, XW, XR = 6, 10, 14, 22, 23, 24, 25
    Lsum, PS, TM = 26, 27, 28
    AF = 32; R = 4
    QACC = 48; HB = 112
    QB = 112; OACC = 144; Sb = (48, 64); Pb = (80, 88); NEGM = 96
    ET = 208
    OBo = 48; OBp = 80; ZA = (112, 128); ZP = 216
    L, H, G1, Rr, C, SW = 48, 49, 50, 51, 52, 53
    t0, t1, t2 = 54, 55, 56
    lane_decomp(em, L, H, G1, Rr, C, SW)
    I("v_lshlrev_b32 v%d, 4, v%d" % (HOFF, L))
    I("v_lshrrev_b32 v%d, 4, v%d" % (t0, L))
    I("v_and_b32 v%d, 15, v%d" % (t1, L))
    I("v_lshlrev_b32 v%d, 2, v%d" % (t2, t0))
    I("v_xor_b32 v%d, v%d, v%d" % (t2, t2, t1))
    I("v_lshlrev_b32 v%d, 4, v%d" % (t2, t2))
    I("v_lshl_add_u32 v%d, v%d, 8, v%d" % (VV, t0, t2))
    I("v_add_u32 v%d, s39, v%d" % (VV, VV))
    I("v_lshl_add_u32 v%d, v%d, 13, v%d" % (VQ, t0, t2))
    I("s_lshl_b32 s50, s35, 17")
    I("s_lshl_b32 s51, s36, 8")
    I("s_add_u32 s50, s50, s51")
    I("v_add_u32 v%d, s50, v%d" % (VQ, VQ))
    I("s_lshl_b32 s50, s35, 2")
    I("v_add_u32 v%d, s50, v%d" % (t2, t0))
    I("v_xor_b32 v%d, v%d, v%d" % (t2, t2, t1))
    I("v_lshlrev_b32 v%d, 4, v%d" % (t2, t2))
    I("v_lshl_add_u32 v%d, v%d, 8, v%d" % (VK, t0, t2))
    I("v_add_u32 v%d, s39, v%d" % (VK, VK))
    I("v_lshrrev_b32 v%d, 3, v%d" % (t0, L))
    I("v_and_b32 v%d, 7, v%d" % (t1, L))
    I("v_bfe_u32 v%d, v%d, 1, 1" % (t2, t0))
    I("v_lshlrev_b32 v%d, 2, v%d" % (t2, t2))
    I("v_xor_b32 v%d, v%d, v%d" % (t2, t2, t1))
    I("v_lshlrev_b32 v%d, 4, v%d" % (t2, t2))
    I("v_mul_u32_u24 v%d, 1152, v%d" % (VWO, t0))
    I("v_add_u32 v%d, v%d, v%d" % (VWO, VWO, t2))
    I("s_mul_i32 s50, s32, %d" % (32 * 1152))
    I("v_add_u32 v%d, s50, v%d" % (VWO, VWO))

    SLOT = 32768
    sctr = [0]
    def sreg():
        sctr[0] = (sctr[0] + 1) % 8
        return 56 + sctr[0]
    dma_tok = {}
    def dma_chunk(c):
        slot = (c % 4) * SLOT
        if c < 9:
            I("s_add_u32 m0, s38, 0x%x" % slot)
            for j in range(4):
                s = sreg(); I("s_mov_b32 s%d, 0x%x" % (s, c * 64 * 8192 + j * (32768 - 1024)))
                tok = I("buffer_load_dwordx4 v%d, s[%d:%d], s%d offen offset:%d lds" % (VQ, S_WQ, S_WQ + 3, s, j * 1024))
        elif c < 17:
            for sub, (kind, tile) in enumerate(kv_chunk[c]):
                s = sreg(); I("s_mov_b32 s%d, 0x%x" % (s, tile * 8192))
                I("s_add_u32 m0, s39, 0x%x" % (slot + sub * 8192))
                if kind == "K": tok = I("buffer_load_dwordx4 v%d, s[%d:%d], s%d offen lds" % (VK, S_K, S_K + 3, s))
                else: tok = I("buffer_load_dwordx4 v%d, s[%d:%d], s%d offen lds" % (VV, S_V, S_V + 3, s))
        else:
            nc = c - 17
            I("s_add_u32 m0, s38, 0x%x" % slot)
            for j in range(4):
                s = sreg(); I("s_mov_b32 s%d, 0x%x" % (s, nc * 128 + j * (9216 - 1024)))
                tok = I("buffer_load_dwordx4 v%d, s[%d:%d], s%d offen offset:%d lds" % (VWO, S_WO, S_WO + 3, s, j * 1024))
        dma_tok[c] = tok
    kv_chunk = {9: [("K", 1), ("K", 2), ("K", 0), ("V", 0)], 16: [("K", 15), ("V", 15), ("V", 13), ("V", 14)]}
    for j in range(1, 7): kv_chunk[9 + j] = [("K", 2 * j + 1), ("K", 2 * j + 2), ("V", 2 * j - 1), ("V", 2 * j)]
    kv_loc = {}
    for c, lst in kv_chunk.items():
        for sub, kt in enumerate(lst): kv_loc[kt] = (c, (c % 4) * SLOT + sub * 8192)

    dma_chunk(0)
    for s in range(8): I("buffer_load_dwordx4 %s, v%d, s[%d:%d], 0 offen offset:%d" % (vr(HB + 4 * s, 4), HOFF, S_H, S_H + 3, 1024 * s)) if s < 4 else None
    def load_h(s):
        sg = sreg(); I("s_mov_b32 s%d, %d" % (sg, (s // 4) * 4096))
        I("buffer_load_dwordx4 %s, v%d, s[%d:%d], s%d offen offset:%d" % (vr(HB + 4 * s, 4), HOFF, S_H, S_H + 3, sg, 1024 * (s % 4)))
    dma_chunk(1)
    for s in range(4, 36): load_h(s)
    dma_chunk(2)

    I("v_lshlrev_b32 v%d, 5, v%d" % (t0, G1))
    I("v_lshl_add_u32 v%d, v%d, 3, v%d" % (t1, SW, t0))
    I("v_lshl_add_u32 v%d, v%d, 3, v%d" % (t2, H, Rr))
    I("v_lshl_add_u32 v%d, v%d, 8, v%d" % (t1, t2, t1))
    I("s_lshl_b32 s50, s36, 14")
    I("v_add_u32 v%d, s50, v%d" % (t1, t1))
    for T in range(4):
        I("v_xor_b32 v%d, %d, v%d" % (t2, T, Rr))
        I("v_lshl_add_u32 v%d, v%d, 6, v%d" % (AQr + T, t2, t1))
    I("v_lshl_add_u32 v%d, v%d, 3, v%d" % (t1, C, t0))
    I("v_lshl_add_u32 v%d, v%d, 2, v%d" % (t2, H, Rr))
    I("v_lshl_add_u32 v%d, v%d, 8, v%d" % (t1, t2, t1))
    for T in range(4):
        I("v_xor_b32 v%d, %d, v%d" % (t2, T, Rr))
        I("v_lshl_add_u32 v%d, v%d, 6, v%d" % (AVr + T, t2, t1))
    I("v_and_b32 v%d, 15, v%d" % (t1, L))
    I("v_xor_b32 v%d, v%d, v%d" % (t1, t1, H))
    I("v_lshlrev_b32 v%d, 4, v%d" % (t1, t1))
    I("v_and_b32 v%d, 31, v%d" % (t2, L))
    I("v_lshl_add_u32 v%d, v%d, 8, v%d" % (AKr, t2, t1))
    for s in range(1, 8): I("v_xor_b32 v%d, %d, v%d" % (AKr + s, 32 * s, AKr))
    I("v_lshl_add_u32 v%d, v%d, 3, v%d" % (t1, SW, t0))
    I("v_lshl_add_u32 v%d, v%d, 2, v%d" % (t2, H, Rr))
    I("v_lshl_add_u32 v%d, v%d, 7, v%d" % (t1, t2, t1))
    I("v_lshrrev_b32 v%d, 1, v%d" % (t2, Rr))
    I("v_xor_b32 v%d, s36, v%d" % (t2, t2))
    I("v_lshl_add_u32 v%d, v%d, 6, v%d" % (t1, t2, t1))
    I("s_lshl_b32 s50, s36, 14")
    I("v_add_u32 v%d, s50, v%d" % (AOo, t1))
    I("s_xor_b32 s50, s50, 16384")
    I("v_add_u32 v%d, s50, v%d" % (AOp, t1))
    I("s_lshl_b32 s50, s35, 13")
    I("s_xor_b32 s51, s36, 1")
    I("s_lshl_b32 s51, s51, 17")
    I("s_add_u32 s51, s51, s50")
    I("v_add_u32 v%d, s51, v%d" % (XW, HOFF))
    I("s_lshl_b32 s51, s36, 17")
    I("s_add_u32 s51, s51, s50")
    I("v_add_u32 v%d, s51, v%d" % (XR, HOFF))
    AQ = [Addr(AQr + T) for T in range(4)]
    AV = [Addr(AVr + T) for T in range(4)]
    AK = [Addr(AKr + s) for s in range(8)]
    AOown, AOpar = Addr(AOo), Addr(AOp)

    pipe = Pipe(em, AF, R)
    NCH = 26
    hold = set()
    def chunk_start(c, extra_dma=(), wait_next=True):
        def f():
            em.comment("---- chunk %d" % c)
            need = [x for x in ((c, c + 1) if wait_next else (c,)) if x in dma_tok]
            em.wait_vm_seq(max(dma_tok[x] for x in need))
            em.barrier()
            for x in extra_dma: dma_chunk(x)
            if c + 3 < NCH and c >= 0 and (c + 3) not in hold and (c + 3) not in dma_tok and c >= 1: dma_chunk(c + 3)
            if c == 0: dma_chunk(3)
        return f

    cq = LOG2E / (128 ** 0.5)
    I("s_mov_b32 s53, %s" % f32(cq))
    def q_convert(T):
        out = []
        for r in range(16): out.append("v_mul_f32 v%d, s53, v%d" % (QACC + 16 * T + r, QACC + 16 * T + r))
        for r in range(8): out.append("v_cvt_pk_bf16_f32 v%d, v%d, v%d" % (QB + 8 * T + r, QACC + 16 * T + 2 * r, QACC + 16 * T + 2 * r + 1))
        out.append(("mark", "q%d" % T))
        return out
    for c in range(9):
        slot = (c % 4) * SLOT
        order = [(s, T) for s in range(4) for T in range(4)] if c < 8 else [(s, T) for T in range(4) for s in range(4)]
        for n, (s, T) in enumerate(order):
            ks = 4 * c + s
            reads = [("tr", AQ[T], slot + (16 * s + 4 * rd) * 256) for rd in range(2)]
            op = Op(reads, HB + 4 * ks, QACC + 16 * T, "0" if ks == 0 else QACC + 16 * T, c)
            if n == 0: op.pre.append(chunk_start(c))
            if n == 0 and c == 0: op.noprefetch_before = True
            pipe.add(op)
    base = len(pipe.ops) - 16
    for T in range(4):
        last = pipe.ops[base + 4 * T + 3]
        last.post.append(lambda T=T: pipe.fill.extend(q_convert(T)))
        if T < 3:
            for k in range(4): pipe.ops[base + 4 * (T + 1) + k].nfill = 6 if k > 0 else 0
    def qk_ops(tile, Sreg, cinit):
        c, loc = kv_loc[("K", tile)]
        ops = []
        for s in range(8):
            ops.append(Op([("b128", AK[s], loc)], QB + 4 * s, Sreg, cinit if s == 0 else Sreg, c))
        return ops
    def pv_ops(tile, Preg, first, tmajor=False):
        c, loc = kv_loc[("V", tile)]
        ops = []
        order = [(u, T) for u in range(2) for T in range(4)] if not tmajor else [(u, T) for T in range(4) for u in range(2)]
        for u, T in order:
            reads = [("tr", AV[T], loc + (16 * u + 8 * rd) * 256) for rd in range(2)]
            ops.append(Op(reads, Preg + 4 * u, OACC + 16 * T, "0" if (first and u == 0) else OACC + 16 * T, c))
        return ops
    def softmax_fast(Sreg, Preg):
        out = []
        for i in range(16):
            e = ET + (i % 8)
            out.append("v_exp_f32 v%d, v%d" % (e, Sreg + i))
            if i % 2 == 1:
                e0 = ET + ((i - 1) % 8)
                if i == 1: out.append("v_add_f32 v%d, v%d, v%d" % (PS, e0, e))
                else:
                    out.append("v_add_f32 v%d, v%d, v%d" % (PS, PS, e0))
                    out.append("v_add_f32 v%d, v%d, v%d" % (PS, PS, e))
                out.append("v_cvt_pk_bf16_f32 v%d, v%d, v%d" % (Preg + i // 2, e0, e))
        return out
    slow_blocks = []
    def slow_path(tau, first):
        Sreg, Preg, Snext = Sb[tau % 2], Pb[tau % 2], Sb[(tau + 1) % 2]
        mx, t, al = TM, TM + 1, TM + 2
        I("v_max3_f32 v%d, v%d, v%d, v%d" % (mx, Sreg, Sreg + 1, Sreg + 2))
        for i in range(3, 15, 2): I("v_max3_f32 v%d, v%d, v%d, v%d" % (mx, mx, Sreg + i, Sreg + i + 1))
        I("v_max_f32 v%d, v%d, v%d" % (mx, mx, Sreg + 15))
        I("v_mov_b32 v%d, v%d" % (t, mx))
        I("v_permlane32_swap_b32 v%d, v%d" % (mx, t))
        I("v_max_f32 v%d, v%d, v%d" % (mx, mx, t))
        I("v_ceil_f32 v%d, v%d" % (mx, mx))
        if not first:
            I("v_max_f32 v%d, 0, v%d" % (mx, mx))
            I("v_sub_f32 v%d, 0, v%d" % (al, mx))
            I("v_exp_f32 v%d, v%d" % (al, al))
            for r in range(64): I("v_mul_f32 v%d, v%d, v%d" % (OACC + r, OACC + r, al))
            I("v_mul_f32 v%d, v%d, v%d" % (Lsum, Lsum, al))
            for r in range(16): I("v_sub_f32 v%d, v%d, v%d" % (NEGM + r, NEGM + r, mx))
        else:
            for r in range(16): I("v_sub_f32 v%d, 0, v%d" % (NEGM + r, mx))
        for r in range(16): I("v_sub_f32 v%d, v%d, v%d" % (Sreg + r, Sreg + r, mx))
        if tau < 15:
            for r in range(16): I("v_sub_f32 v%d, v%d, v%d" % (Snext + r, Snext + r, mx))
        for x in softmax_fast(Sreg, Preg): I(x)
    def check(tau):
        def f():
            pipe.flush_fill()
            I("v_cmp_ngt_f32 vcc, s52, v%d" % PS)
            I("s_cbranch_vccnz L_slow_%d" % tau)
            em.label("L_back_%d" % tau)
            I("v_add_f32 v%d, v%d, v%d" % (Lsum, Lsum, PS))
            slow_blocks.append(tau)
        return f
    started = set()
    def add_ops(ops):
        for op in ops:
            if op.chunk not in started:
                started.add(op.chunk); op.pre.insert(0, chunk_start(op.chunk))
            pipe.add(op)
    for c in range(9): started.add(c)
    ops = qk_ops(0, Sb[0], "0")
    for s_, o in enumerate(ops):
        o.nfill = 6
        o.pre.append(lambda s_=s_: pipe.ensure("q%d" % (s_ // 2)))
    add_ops(ops)
    ops = qk_ops(1, Sb[1], "0")
    ops[0].pre.append(pipe.flush_fill)
    def first_sm():
        slow_path(0, True)
        I("v_mov_b32 v%d, v%d" % (Lsum, PS))
    ops[-1].post.append(first_sm)
    add_ops(ops)
    for tau in range(1, 16):
        ops = []
        if tau + 1 <= 15: ops += qk_ops(tau + 1, Sb[(tau + 1) % 2], NEGM)
        ops += pv_ops(tau - 1, Pb[(tau - 1) % 2], tau == 1)
        sm = softmax_fast(Sb[tau % 2], Pb[tau % 2])
        ops[0].pre.append(lambda sm=sm: pipe.fill.extend(sm))
        per = -(-len(sm) // len(ops))
        for o in ops: o.nfill = per
        ops[-1].post.append(check(tau))
        add_ops(ops)
    hold.add(20)
    INV = TM + 3
    def norm_prep():
        I("v_mov_b32 v%d, v%d" % (TM, Lsum))
        I("v_permlane32_swap_b32 v%d, v%d" % (Lsum, TM))
        I("v_add_f32 v%d, v%d, v%d" % (Lsum, Lsum, TM))
        I("v_rcp_f32 v%d, v%d" % (INV, Lsum))
    ops = pv_ops(15, Pb[1], False, tmajor=True)
    ops[0].post.append(norm_prep)
    add_ops(ops)
    def o_finish():
        for T in range(4):
            for r in range(16): I("v_mul_f32 v%d, v%d, v%d" % (OACC + 16 * T + r, OACC + 16 * T + r, INV))
            for r in range(8): I("v_cvt_pk_bf16_f32 v%d, v%d, v%d" % (OBo + 8 * T + r, OACC + 16 * T + 2 * r, OACC + 16 * T + 2 * r + 1))
    pipe.ops[-1].post.append(o_finish)
    def exchange():
        for f in range(8): I("ds_write_b128 v%d, %s offset:%d" % (XW, vr(OBo + 4 * f, 4), 1024 * f))
        em.wait_all_lg()
        em.barrier()
        for f in range(8): I("ds_read_b128 %s, v%d offset:%d" % (vr(OBp + 4 * f, 4), XR, 1024 * f))
    def z_store(nc):
        za = ZA[nc % 2]; out = []
        for r in range(8): out.append("v_cvt_pk_bf16_f32 v%d, v%d, v%d" % (ZP + r, za + 2 * r, za + 2 * r + 1))
        def st():
            s = sreg(); I("s_lshl_b32 s%d, s36, 11" % s); I("s_add_u32 s%d, s%d, %d" % (s, s, nc * 4096))
            I("buffer_store_dwordx4 %s, v%d, s[%d:%d], s%d offen" % (vr(ZP, 4), HOFF, S_P, S_P + 3, s))
            I("buffer_store_dwordx4 %s, v%d, s[%d:%d], s%d offen offset:1024" % (vr(ZP + 4, 4), HOFF, S_P, S_P + 3, s))
        out.append(st)
        return out
    for nc in range(9):
        c = 17 + nc; slot = (c % 4) * SLOT
        ops = []
        for k in range(16):
            own = k < 8; ks = k % 8
            A = AOown if own else AOpar
            reads = [("tr", A, slot + (16 * ks + 8 * rd) * 128) for rd in range(2)]
            B = (OBo if own else OBp) + 4 * ks
            ops.append(Op(reads, B, ZA[nc % 2], "0" if k == 0 else ZA[nc % 2], c))
        started.add(c)
        if c == 18: ops[0].pre.append(chunk_start(c, extra_dma=(20,)))
        else: ops[0].pre.append(chunk_start(c, wait_next=(c != 19)))
        if c == 17: ops[0].pre.append(exchange)
        if c == 20: ops[0].noprefetch_before = True
        if nc > 0:
            ops[1].pre.append(lambda nc=nc: pipe.fill.extend(z_store(nc - 1)))
            for o in ops[1:]: o.nfill = 2
        for o in ops: pipe.add(o)
    pipe.ops[-1].post.append(lambda: [pipe.fill.extend(z_store(8)), pipe.flush_fill()])
    pipe.run()
    em.raw("s_endpgm")
    for tau in slow_blocks:
        em.label("L_slow_%d" % tau)
        em.nop(16); em.nop(4)
        sv = (em.pend.copy(), em.vm_done, em.lg_done)
        slow_path(tau, False)
        em.nop(4)
        em.raw("s_branch L_back_%d" % tau)
    em.label("L_attn_end")
    em.raw("s_endpgm")
    return em, "grid=(256,1,1) block=(512,1,1) lds=163840"

def gen_ffn():
    em = Emit("ffn_kernel")
    I = em.I
    I("s_cmp_ge_u32 s2, 256")
    I("s_cbranch_scc1 L_ffn_end")
    load_ptr(em, 40, "wg"); load_ptr(em, 42, "wu"); load_ptr(em, 44, "wd"); load_ptr(em, 48, "ws")
    wg_decode(em)
    S_G, S_U, S_D, S_2, S_H, S_P = 8, 12, 16, 20, 24, 28
    I("s_mul_i32 s50, s33, 576")
    make_srd(em, S_G, 40, 576 * 9216, off_sgpr=50)
    make_srd(em, S_U, 42, 576 * 9216, off_sgpr=50)
    I("s_mul_i32 s50, s33, %d" % (288 * 1152))
    make_srd(em, S_D, 44, 4608 * 1152, off_sgpr=50)
    I("s_mul_i32 s50, s37, 36864")
    make_srd(em, S_H, 48, WS_H2 + FRAG, off_const=WS_H2, off_sgpr=50)
    I("s_mul_i32 s51, s33, 0x%x" % FRAG)
    I("s_add_u32 s50, s50, s51")
    make_srd(em, S_P, 48, WS_END, off_const=WS_P, off_sgpr=50)
    I("s_cmp_lt_u32 s32, 2")
    I("s_cselect_b32 s%d, s%d, s%d" % (S_2, S_G, S_U))
    I("s_cselect_b32 s%d, s%d, s%d" % (S_2 + 1, S_G + 1, S_U + 1))
    I("s_mov_b32 s%d, s%d" % (S_2 + 2, S_G + 2))
    I("s_mov_b32 s%d, 0x00020000" % (S_2 + 3))
    I("s_lshl_b32 s39, s32, 10")
    I("s_lshl_b32 s38, s35, 10")
    I("s_add_u32 s38, s38, 32768")
    HOFF, VG, VU, V2, V4, VD, VD4 = 1, 2, 3, 4, 5, 6, 7
    AGr, ADo, ADp, XW, XR = 8, 9, 10, 11, 12
    TM = 13
    AF = 20; R = 4
    GA = (36, 52)
    ABo = 68
    T2 = 104
    HB = 112
    ABp = 112
    ZA = (148, 164); ZP = 180
    L, H, G1, Rr, C, SW = 36, 37, 38, 39, 40, 41
    t0, t1, t2 = 42, 43, 44
    lane_decomp(em, L, H, G1, Rr, C, SW)
    I("v_lshlrev_b32 v%d, 4, v%d" % (HOFF, L))
    I("v_lshrrev_b32 v%d, 2, v%d" % (t0, L))
    I("s_movk_i32 s50, 9216")
    I("v_mul_lo_u32 v%d, v%d, s50" % (t0, t0))
    I("v_lshl_add_u32 v%d, v%d, 4, v%d" % (t1, C, t0))
    I("v_xor_b32 v%d, 32, v%d" % (t2, t1))
    I("s_mul_i32 s50, s32, %d" % (16 * 9216))
    I("v_add_u32 v%d, s50, v%d" % (VG, t1))
    I("v_add_u32 v%d, s50, v%d" % (VU, t2))
    I("v_add_u32 v%d, 0x%x, v%d" % (V2, 256 * 9216, VG))
    I("v_subrev_u32 v%d, 0x%x, v%d" % (V4, 32 * 9216, VU))
    I("s_cmp_lt_u32 s32, 2")
    I("s_cselect_b64 vcc, -1, 0")
    I("v_cndmask_b32 v%d, v%d, v%d, vcc" % (V2, V4, V2))
    I("s_add_u32 s50, s35, 14")
    I("s_mul_i32 s50, s50, %d" % (16 * 9216))
    I("v_add_u32 v%d, s50, v%d" % (V4, t2))
    I("v_lshrrev_b32 v%d, 3, v%d" % (t0, L))
    I("v_and_b32 v%d, 7, v%d" % (t1, L))
    I("v_bfe_u32 v%d, v%d, 1, 1" % (t2, t0))
    I("v_lshlrev_b32 v%d, 2, v%d" % (t2, t2))
    I("v_xor_b32 v%d, v%d, v%d" % (t2, t2, t1))
    I("v_lshlrev_b32 v%d, 4, v%d" % (t2, t2))
    I("v_mul_u32_u24 v%d, 1152, v%d" % (t0, t0))
    I("v_add_u32 v%d, v%d, v%d" % (t0, t0, t2))
    I("s_mul_i32 s50, s32, %d" % (8 * 1152))
    I("v_add_u32 v%d, s50, v%d" % (VD, t0))
    I("s_add_u32 s50, s35, 32")
    I("s_mul_i32 s50, s50, %d" % (8 * 1152))
    I("v_add_u32 v%d, s50, v%d" % (VD4, t0))

    SLOT = 36864
    sctr = [0]
    def sreg():
        sctr[0] = (sctr[0] + 1) % 8
        return 56 + sctr[0]
    dma_tok = {}
    lab = [0]
    def dma(vo, srd, soff, m0s, m0c, optional=None):
        s = sreg()
        if optional is not None:
            lab[0] += 1
            I("s_cmp_lg_u32 s36, %d" % optional)
            I("s_cbranch_scc1 L_ffn_skip%d" % lab[0])
            pos0 = em.pos
        I("s_mov_b32 s%d, 0x%x" % (s, soff))
        I("s_add_u32 m0, s%d, 0x%x" % (m0s, m0c))
        tok = I("buffer_load_dwordx4 v%d, s[%d:%d], s%d offen lds" % (vo, srd, srd + 3, s))
        if optional is not None:
            em.vm_iss -= 1
            em.label("L_ffn_skip%d" % lab[0])
            em.pos = pos0
        return tok
    def dma_chunk(c):
        slot = (c % 4) * SLOT
        if c < 18:
            fg, kh = c // 2, c % 2
            b = 288 * kh * 9216 + fg * 64
            dma(V4, S_U, b, 38, slot, optional=c & 1)
            dma(VG, S_G, b, 39, slot)
            dma(VG, S_G, b + 128 * 9216, 39, slot + 8192)
            dma(V2, S_2, b, 39, slot + 16384)
            tok = dma(VU, S_U, b + 96 * 9216, 39, slot + 24576)
        else:
            nc = c - 18
            dma(VD4, S_D, nc * 128, 38, slot, optional=c & 1)
            for q in range(4): tok = dma(VD, S_D, nc * 128 + q * 64 * 1152, 39, slot + q * 8192)
        dma_tok[c] = tok
    def load_h(s):
        sg = sreg(); I("s_mov_b32 s%d, %d" % (sg, (s // 4) * 4096))
        I("buffer_load_dwordx4 %s, v%d, s[%d:%d], s%d offen offset:%d" % (vr(HB + 4 * s, 4), HOFF, S_H, S_H + 3, sg, 1024 * (s % 4)))
    dma_chunk(0)
    for s in range(18): load_h(s)
    dma_chunk(1)
    for s in range(18, 36): load_h(s)
    dma_chunk(2)
    I("v_mul_u32_u24 v%d, 18432, v%d" % (t0, G1))
    I("v_lshl_add_u32 v%d, v%d, 3, v%d" % (t1, H, Rr))
    I("v_lshl_add_u32 v%d, v%d, 6, v%d" % (t0, t1, t0))
    I("v_xor_b32 v%d, s36, v%d" % (t1, G1))
    I("v_lshl_add_u32 v%d, v%d, 5, v%d" % (t0, t1, t0))
    I("v_lshl_add_u32 v%d, v%d, 3, v%d" % (AGr, C, t0))
    I("v_lshlrev_b32 v%d, 5, v%d" % (t0, G1))
    I("v_lshl_add_u32 v%d, v%d, 3, v%d" % (t1, SW, t0))
    I("v_lshl_add_u32 v%d, v%d, 2, v%d" % (t2, H, Rr))
    I("v_lshl_add_u32 v%d, v%d, 7, v%d" % (t1, t2, t1))
    I("v_lshrrev_b32 v%d, 1, v%d" % (t2, Rr))
    I("v_xor_b32 v%d, s36, v%d" % (t2, t2))
    I("v_lshl_add_u32 v%d, v%d, 6, v%d" % (t1, t2, t1))
    I("s_lshl_b32 s50, s36, 11")
    I("v_add_u32 v%d, s50, v%d" % (ADo, t1))
    I("s_xor_b32 s50, s50, 2048")
    I("v_add_u32 v%d, s50, v%d" % (ADp, t1))
    I("s_mul_i32 s50, s32, 9216")
    I("v_add_u32 v%d, s50, v%d" % (XW, HOFF))
    I("s_xor_b32 s51, s32, 4")
    I("s_mul_i32 s50, s51, 9216")
    I("v_add_u32 v%d, s50, v%d" % (XR, HOFF))
    AG, ADown, ADpar = Addr(AGr), Addr(ADo), Addr(ADp)
    I("s_mov_b32 s53, %s" % f32(-LOG2E))

    pipe = Pipe(em, AF, R)
    NCH = 27
    hold = {20, 21}
    def chunk_start(c, extra_dma=(), wait_next=True):
        def f():
            em.comment("---- chunk %d" % c)
            need = [x for x in ((c, c + 1) if wait_next else (c,)) if x in dma_tok]
            em.wait_vm_seq(max(dma_tok[x] for x in need))
            em.barrier()
            for x in extra_dma: dma_chunk(x)
            if c + 3 < NCH and (c + 3) not in hold and (c + 3) not in dma_tok: dma_chunk(c + 3)
        return f
    def silu(fg):
        ga = GA[fg % 2]; out = []
        for p in range(4):
            g0, g1, u0, u1 = ga + 2 * p, ga + 2 * p + 1, ga + 8 + 2 * p, ga + 9 + 2 * p
            a, b = T2 + (p % 2) * 4, T2 + (p % 2) * 4 + 1
            t = T2 + (p % 2) * 4 + 2
            out.append("v_cvt_pk_bf16_f32 v%d, v%d, v%d" % (t, g0, g1))
            out.append("v_lshlrev_b32 v%d, 16, v%d" % (g0, t))
            out.append("v_and_b32 v%d, 0xffff0000, v%d" % (g1, t))
            out.append("v_mul_f32 v%d, s53, v%d" % (a, g0))
            out.append("v_mul_f32 v%d, s53, v%d" % (b, g1))
            out.append("v_exp_f32 v%d, v%d" % (a, a))
            out.append("v_exp_f32 v%d, v%d" % (b, b))
            out.append("v_cvt_pk_bf16_f32 v%d, v%d, v%d" % (t, u0, u1))
            out.append("v_add_f32 v%d, 1.0, v%d" % (a, a))
            out.append("v_add_f32 v%d, 1.0, v%d" % (b, b))
            out.append("v_rcp_f32 v%d, v%d" % (a, a))
            out.append("v_rcp_f32 v%d, v%d" % (b, b))
            out.append("v_lshlrev_b32 v%d, 16, v%d" % (u0, t))
            out.append("v_and_b32 v%d, 0xffff0000, v%d" % (u1, t))
            out.append("v_mul_f32 v%d, v%d, v%d" % (a, a, g0))
            out.append("v_mul_f32 v%d, v%d, v%d" % (b, b, g1))
            out.append("v_cvt_pk_bf16_f32 v%d, v%d, v%d" % (t, a, b))
            out.append("v_lshlrev_b32 v%d, 16, v%d" % (a, t))
            out.append("v_and_b32 v%d, 0xffff0000, v%d" % (b, t))
            out.append("v_mul_f32 v%d, v%d, v%d" % (a, a, u0))
            out.append("v_mul_f32 v%d, v%d, v%d" % (b, b, u1))
            out.append("v_cvt_pk_bf16_f32 v%d, v%d, v%d" % (ABo + 4 * fg + p, a, b))
        return out
    for c in range(18):
        fg, kh = c // 2, c % 2
        slot = (c % 4) * SLOT
        ops = []
        for s in range(18):
            ks = 18 * kh + s
            reads = [("tr", AG, slot + (16 * s + 4 * rd) * 64) for rd in range(2)]
            ops.append(Op(reads, HB + 4 * ks, GA[fg % 2], "0" if ks == 0 else GA[fg % 2], c))
        ops[0].pre.append(chunk_start(c))
        if c == 0: ops[0].noprefetch_before = True
        if kh == 0 and fg > 0:
            ops[1].pre.append(lambda fg=fg: pipe.fill.extend(silu(fg - 1)))
        for o in ops[1:]: o.nfill = 3
        if kh == 1: ops[-1].post.append(pipe.flush_fill)
        for o in ops: pipe.add(o)
    pipe.ops[-1].post.append(lambda: [pipe.fill.extend(silu(8)), pipe.flush_fill()])
    def exchange():
        for f in range(9): I("ds_write_b128 v%d, %s offset:%d" % (XW, vr(ABo + 4 * f, 4), 1024 * f))
        em.wait_all_lg()
        em.barrier()
        for f in range(9): I("ds_read_b128 %s, v%d offset:%d" % (vr(ABp + 4 * f, 4), XR, 1024 * f))
    def z_store(nc):
        za = ZA[nc % 2]; out = []
        for r in range(8): out.append("v_cvt_pk_bf16_f32 v%d, v%d, v%d" % (ZP + r, za + 2 * r, za + 2 * r + 1))
        def st():
            s = sreg(); I("s_lshl_b32 s%d, s36, 11" % s); I("s_add_u32 s%d, s%d, %d" % (s, s, nc * 4096))
            I("buffer_store_dwordx4 %s, v%d, s[%d:%d], s%d offen" % (vr(ZP, 4), HOFF, S_P, S_P + 3, s))
            I("buffer_store_dwordx4 %s, v%d, s[%d:%d], s%d offen offset:1024" % (vr(ZP + 4, 4), HOFF, S_P, S_P + 3, s))
        out.append(st)
        return out
    for nc in range(9):
        c = 18 + nc; slot = (c % 4) * SLOT
        ops = []
        for k in range(18):
            own = k < 9; fg = k % 9
            A = ADown if own else ADpar
            reads = [("tr", A, slot + (32 * fg + 8 * rd) * 128) for rd in range(2)]
            B = (ABo if own else ABp) + 4 * fg
            ops.append(Op(reads, B, ZA[nc % 2], "0" if k == 0 else ZA[nc % 2], c))
        if c == 19: ops[0].pre.append(chunk_start(c, extra_dma=(20, 21), wait_next=False))
        else: ops[0].pre.append(chunk_start(c))
        if c == 18: ops[0].pre.append(exchange)
        if c == 20: ops[0].noprefetch_before = True
        if nc > 0:
            ops[1].pre.append(lambda nc=nc: pipe.fill.extend(z_store(nc - 1)))
            for o in ops[1:]: o.nfill = 2
        for o in ops: pipe.add(o)
    pipe.ops[-1].post.append(lambda: [pipe.fill.extend(z_store(8)), pipe.flush_fill()])
    pipe.run()
    em.label("L_ffn_end")
    em.raw("s_endpgm")
    return em, "grid=(256,1,1) block=(512,1,1) lds=163840"
```

```python
from emit import Emit, kernel_text
import struct

KA = dict(x=0, k=8, v=16, wq=24, wo=32, bx=40, wg=48, wu=56, wd=64, c=72, wmod=80, out=88, dbg=96, ws=104)
FRAG = 0x240000
WS_MOD = 0
WS_H = 0x10000
WS_X1 = 0x280000
WS_H2 = 0x500000
WS_P = 0x800000
WS_END = WS_P + 16 * FRAG

def f32(x): return "0x%08x" % struct.unpack("<I", struct.pack("<f", x))[0]

def load_ptr(em, sdst, name):
    em.I("s_load_dwordx2 s[%d:%d], s[0:1], %d" % (sdst, sdst + 1, KA[name]))

def make_srd(em, sd, sptr, nbytes, off_const=0, off_sgpr=None):
    if off_const:
        em.I("s_add_u32 s%d, s%d, 0x%x" % (sd, sptr, off_const))
        em.I("s_addc_u32 s%d, s%d, 0" % (sd + 1, sptr + 1))
    else:
        em.I("s_mov_b32 s%d, s%d" % (sd, sptr))
        em.I("s_mov_b32 s%d, s%d" % (sd + 1, sptr + 1))
    em.I("s_mov_b32 s%d, 0x%x" % (sd + 2, nbytes - off_const))
    if off_sgpr is not None:
        em.I("s_add_u32 s%d, s%d, s%d" % (sd, sd, off_sgpr))
        em.I("s_addc_u32 s%d, s%d, 0" % (sd + 1, sd + 1))
        em.I("s_sub_u32 s%d, s%d, s%d" % (sd + 2, sd + 2, off_sgpr))
    em.I("s_mov_b32 s%d, 0x00020000" % (sd + 3))

def vr(a, n=1):
    return "v%d" % a if n == 1 else "v[%d:%d]" % (a, a + n - 1)
def sr(a, n=1):
    return "s%d" % a if n == 1 else "s[%d:%d]" % (a, a + n - 1)

def round_bf16_pair(em, a, b, tmp):
    em.I("v_cvt_pk_bf16_f32 v%d, v%d, v%d" % (tmp, a, b))
    em.I("v_lshlrev_b32 v%d, 16, v%d" % (a, tmp))
    em.I("v_and_b32 v%d, 0xffff0000, v%d" % (b, tmp))

def round_bf16_one(em, a, tmp):
    em.I("v_cvt_pk_bf16_f32 v%d, v%d, v%d" % (tmp, a, a))
    em.I("v_and_b32 v%d, 0xffff0000, v%d" % (a, tmp))

def wave_reduce_8_16_32(em, v, tmp):
    em.I("v_add_f32_dpp v%d, v%d, v%d row_ror:8 row_mask:0xf bank_mask:0xf" % (tmp, v, v))
    em.I("v_mov_b32 v%d, v%d" % (v, tmp))
    em.I("v_permlane16_swap_b32 v%d, v%d" % (v, tmp))
    em.I("v_add_f32 v%d, v%d, v%d" % (v, v, tmp))
    em.I("v_mov_b32 v%d, v%d" % (tmp, v))
    em.I("v_permlane32_swap_b32 v%d, v%d" % (v, tmp))
    em.I("v_add_f32 v%d, v%d, v%d" % (v, v, tmp))
```

```python
from gen_common import *
LOG2E = 1.4426950408889634

def gen_mod():
    em = Emit("mod_kernel")
    em.I("s_cmp_ge_u32 s2, 54")
    em.I("s_cbranch_scc1 L_mod_end")
    load_ptr(em, 4, "c"); load_ptr(em, 6, "wmod"); load_ptr(em, 20, "ws")
    em.I("v_and_b32 v1, 7, v0")
    em.I("v_lshrrev_b32 v2, 3, v0")
    em.I("s_mov_b32 s22, 6912")
    em.I("v_mul_lo_u32 v3, v2, s22")
    em.I("v_lshl_add_u32 v3, v1, 4, v3")
    em.I("v_lshlrev_b32 v4, 1, v2")
    em.I("s_lshl_b32 s23, s2, 7")
    make_srd(em, 8, 4, 1152)
    make_srd(em, 12, 6, 576 * 6912, off_sgpr=23)
    make_srd(em, 16, 20, WS_MOD + 3456 * 4, off_const=WS_MOD)
    for i in range(9):
        em.I("buffer_load_ushort v%d, v4, s[8:11], 0 offen offset:%d" % (8 + i, 128 * i))
    for i in range(9):
        em.I("s_mov_b32 s%d, %d" % (24 + i, 64 * i * 6912))
        em.I("buffer_load_dwordx4 %s, v3, s[12:15], s%d offen" % (vr(32 + 4 * i, 4), 24 + i))
    for i in range(9):
        c = 8 + i
        em.I("v_lshlrev_b32 v%d, 16, v%d" % (c, c))
        em.I("v_mul_f32 v20, %s, v%d" % (f32(-LOG2E), c))
        em.I("v_exp_f32 v20, v20")
        em.I("v_add_f32 v20, 1.0, v20")
        em.I("v_rcp_f32 v20, v20")
        em.I("v_mul_f32 v%d, v%d, v20" % (c, c))
        round_bf16_one(em, c, 20)
    ACC = 72
    for e in range(8): em.I("v_mov_b32 v%d, 0" % (ACC + e))
    for i in range(9):
        for d in range(4):
            w = 32 + 4 * i + d
            em.I("v_lshlrev_b32 v20, 16, v%d" % w)
            em.I("v_and_b32 v21, 0xffff0000, v%d" % w)
            em.I("v_fmac_f32 v%d, v20, v%d" % (ACC + 2 * d, 8 + i))
            em.I("v_fmac_f32 v%d, v21, v%d" % (ACC + 2 * d + 1, 8 + i))
    for e in range(8): wave_reduce_8_16_32(em, ACC + e, 20)
    em.I("v_lshrrev_b32 v5, 6, v0")
    em.I("v_lshlrev_b32 v5, 8, v5")
    em.I("v_lshl_add_u32 v5, v1, 5, v5")
    em.I("v_and_b32 v6, 63, v0")
    em.I("v_cmp_gt_u32 vcc, 8, v6")
    em.I("s_and_saveexec_b64 s[40:41], vcc")
    em.I("ds_write_b128 v5, %s" % vr(ACC, 4))
    em.I("ds_write_b128 v5, %s offset:16" % vr(ACC + 4, 4))
    em.I("s_mov_b64 exec, s[40:41]")
    em.wait_all_lg()
    em.barrier()
    em.I("v_cmp_gt_u32 vcc, 64, v0")
    em.I("s_and_saveexec_b64 s[40:41], vcc")
    em.I("s_cbranch_execz L_mod_end")
    em.I("v_lshlrev_b32 v5, 2, v0")
    for w in range(8): em.I("ds_read_b32 v%d, v5 offset:%d" % (8 + w, 256 * w))
    for w in range(1, 8): em.I("v_add_f32 v8, v8, v%d" % (8 + w))
    round_bf16_one(em, 8, 20)
    em.I("s_lshl_b32 s23, s2, 8")
    em.I("buffer_store_dword v8, v5, s[16:19], s23 offen")
    em.label("L_mod_end")
    em.raw("s_endpgm")
    return em, "grid=(54,1,1) block=(512,1,1) lds=2048"

def gen_ln(name, mode):
    em = Emit(name)
    L = "L_%s_end" % name
    em.I("s_cmp_ge_u32 s2, 256")
    em.I("s_cbranch_scc1 " + L)
    load_ptr(em, 4, "x"); load_ptr(em, 6, "ws"); load_ptr(em, 36, "out")
    em.I("v_and_b32 v1, 7, v0")
    em.I("v_bfe_u32 v2, v0, 3, 1")
    em.I("v_lshrrev_b32 v3, 4, v0")
    em.I("s_lshr_b32 s20, s2, 2")
    em.I("s_mul_i32 s20, s20, 36864")
    em.I("s_and_b32 s21, s2, 3")
    em.I("s_lshl_b32 s21, s21, 7")
    em.I("s_add_u32 s20, s20, s21")
    em.I("v_lshlrev_b32 v4, 10, v3")
    em.I("v_lshl_add_u32 v4, v2, 9, v4")
    em.I("v_lshl_add_u32 v4, v1, 4, v4")
    em.I("v_add_u32 v4, s20, v4")
    em.I("s_mul_i32 s22, s2, 9216")
    em.I("v_mul_u32_u24 v5, 1152, v1")
    em.I("v_lshl_add_u32 v5, v3, 5, v5")
    em.I("v_lshl_add_u32 v5, v2, 4, v5")
    em.I("v_add_u32 v5, s22, v5")
    em.I("v_lshlrev_b32 v6, 6, v3")
    em.I("v_lshl_add_u32 v6, v2, 5, v6")
    make_srd(em, 8, 4, 2048 * 1152)
    make_srd(em, 12, 6, WS_END)
    make_srd(em, 16, 36, 2048 * 1152)
    X = 8
    G = 12
    CA = 20
    SA = 28
    PB = 40
    Z = 104
    T = 112
    def load_mod(dst, idx):
        em.I("s_mov_b32 s24, %d" % (WS_MOD + idx * 576 * 4))
        em.I("buffer_load_dwordx4 %s, v6, s[12:15], s24 offen" % vr(dst, 4))
        em.I("buffer_load_dwordx4 %s, v6, s[12:15], s24 offen offset:16" % vr(dst + 4, 4))
    if mode == "fin":
        em.I("s_mov_b32 s25, 0x%x" % WS_X1)
        em.I("buffer_load_dwordx4 %s, v4, s[12:15], s25 offen" % vr(X, 4))
    else:
        em.I("buffer_load_dwordx4 %s, v5, s[8:11], 0 offen" % vr(X, 4))
    if mode != "ln1":
        for p in range(16):
            em.I("s_mov_b32 s%d, 0x%x" % (40 + p, WS_P + p * FRAG))
            em.I("buffer_load_dwordx4 %s, v4, s[12:15], s%d offen" % (vr(PB + 4 * p, 4), 40 + p))
        load_mod(G, 2 if mode == "ln2" else 5)
    if mode == "ln1": load_mod(CA, 1); load_mod(SA, 0)
    if mode == "ln2": load_mod(CA, 4); load_mod(SA, 3)
    XV = 120
    for d in range(4):
        em.I("v_lshlrev_b32 v%d, 16, v%d" % (XV + 2 * d, X + d))
        em.I("v_and_b32 v%d, 0xffff0000, v%d" % (XV + 2 * d + 1, X + d))
    if mode != "ln1":
        for p in range(16):
            for d in range(4):
                src = PB + 4 * p + d
                if p == 0:
                    em.I("v_lshlrev_b32 v%d, 16, v%d" % (Z + 2 * d, src))
                    em.I("v_and_b32 v%d, 0xffff0000, v%d" % (Z + 2 * d + 1, src))
                else:
                    em.I("v_lshlrev_b32 v%d, 16, v%d" % (T, src))
                    em.I("v_and_b32 v%d, 0xffff0000, v%d" % (T + 1, src))
                    em.I("v_add_f32 v%d, v%d, v%d" % (Z + 2 * d, Z + 2 * d, T))
                    em.I("v_add_f32 v%d, v%d, v%d" % (Z + 2 * d + 1, Z + 2 * d + 1, T + 1))
        for d in range(4): round_bf16_pair(em, Z + 2 * d, Z + 2 * d + 1, T)
        for e in range(8): em.I("v_mul_f32 v%d, v%d, v%d" % (Z + e, Z + e, G + e))
        for d in range(4): round_bf16_pair(em, Z + 2 * d, Z + 2 * d + 1, T)
        for e in range(8): em.I("v_add_f32 v%d, v%d, v%d" % (XV + e, XV + e, Z + e))
        for d in range(4): em.I("v_cvt_pk_bf16_f32 v%d, v%d, v%d" % (X + d, XV + 2 * d, XV + 2 * d + 1))
        if mode == "fin":
            em.I("buffer_store_dwordx4 %s, v5, s[16:19], 0 offen" % vr(X, 4))
            em.label(L); em.raw("s_endpgm")
            return em, "grid=(256,1,1) block=(576,1,1) lds=0"
        em.I("s_mov_b32 s25, 0x%x" % WS_X1)
        em.I("buffer_store_dwordx4 %s, v4, s[12:15], s25 offen" % vr(X, 4))
        for d in range(4):
            em.I("v_lshlrev_b32 v%d, 16, v%d" % (XV + 2 * d, X + d))
            em.I("v_and_b32 v%d, 0xffff0000, v%d" % (XV + 2 * d + 1, X + d))
    em.I("v_lshrrev_b32 v7, 6, v0")
    em.I("v_lshlrev_b32 v36, 6, v1")
    em.I("v_lshl_add_u32 v7, v7, 2, v36")
    em.I("v_and_b32 v37, 63, v0")
    def row_reduce(acc, ldsoff):
        wave_reduce_8_16_32(em, acc, T)
        em.I("v_cmp_gt_u32 vcc, 8, v37")
        em.I("s_and_saveexec_b64 s[30:31], vcc")
        em.I("ds_write_b32 v7, v%d offset:%d" % (acc, ldsoff))
        em.I("s_mov_b64 exec, s[30:31]")
        em.wait_all_lg()
        em.barrier()
        em.I("ds_read_b128 %s, v36 offset:%d" % (vr(PB, 4), ldsoff))
        em.I("ds_read_b128 %s, v36 offset:%d" % (vr(PB + 4, 4), ldsoff + 16))
        em.I("ds_read_b32 v%d, v36 offset:%d" % (PB + 8, ldsoff + 32))
        em.I("v_add_f32 v%d, v%d, v%d" % (acc, PB, PB + 1))
        for i in range(2, 9): em.I("v_add_f32 v%d, v%d, v%d" % (acc, acc, PB + i))
    S = 38; M = 39
    em.I("v_add_f32 v%d, v%d, v%d" % (S, XV, XV + 1))
    for e in range(2, 8): em.I("v_add_f32 v%d, v%d, v%d" % (S, S, XV + e))
    row_reduce(S, 0)
    em.I("v_mul_f32 v%d, %s, v%d" % (M, f32(1.0 / 576), S))
    em.I("v_sub_f32 v%d, v%d, v%d" % (T + 2, XV, M))
    em.I("v_mul_f32 v%d, v%d, v%d" % (S, T + 2, T + 2))
    for e in range(1, 8):
        em.I("v_sub_f32 v%d, v%d, v%d" % (T + 2, XV + e, M))
        em.I("v_fmac_f32 v%d, v%d, v%d" % (S, T + 2, T + 2))
    row_reduce(S, 512)
    em.I("v_mul_f32 v%d, %s, v%d" % (S, f32(1.0 / 576), S))
    round_bf16_pair(em, S, M, T)
    em.I("v_add_f32 v%d, %s, v%d" % (S, f32(1e-5), S))
    round_bf16_one(em, S, T)
    em.I("v_sqrt_f32 v%d, v%d" % (S, S))
    round_bf16_one(em, S, T)
    em.I("v_rcp_f32 v%d, v%d" % (S, S))
    for e in range(8): em.I("v_sub_f32 v%d, v%d, v%d" % (XV + e, XV + e, M))
    for d in range(4): round_bf16_pair(em, XV + 2 * d, XV + 2 * d + 1, T)
    for e in range(8): em.I("v_mul_f32 v%d, v%d, v%d" % (XV + e, XV + e, S))
    for d in range(4): round_bf16_pair(em, XV + 2 * d, XV + 2 * d + 1, T)
    for e in range(8): em.I("v_add_f32 v%d, 1.0, v%d" % (CA + e, CA + e))
    for d in range(4): round_bf16_pair(em, CA + 2 * d, CA + 2 * d + 1, T)
    for e in range(8): em.I("v_mul_f32 v%d, v%d, v%d" % (XV + e, XV + e, CA + e))
    for d in range(4): round_bf16_pair(em, XV + 2 * d, XV + 2 * d + 1, T)
    for e in range(8): em.I("v_add_f32 v%d, v%d, v%d" % (XV + e, XV + e, SA + e))
    for d in range(4): em.I("v_cvt_pk_bf16_f32 v%d, v%d, v%d" % (PB + d, XV + 2 * d, XV + 2 * d + 1))
    em.I("s_mov_b32 s25, 0x%x" % (WS_H if mode == "ln1" else WS_H2))
    em.I("buffer_store_dwordx4 %s, v4, s[12:15], s25 offen" % vr(PB, 4))
    em.label(L); em.raw("s_endpgm")
    return em, "grid=(256,1,1) block=(576,1,1) lds=1024"
```

```python
import sys
sys.path.insert(0, "dev")
from gen_common import *
from gen_small import gen_mod, gen_ln
from gen_big import gen_attn, gen_ffn
NAME = "adaLN_cond__sliding_block_cached__swiglu_ffn__prompt"
def build(path):
    ks = [gen_mod(), gen_ln("ln1_kernel", "ln1"), gen_attn(), gen_ln("ln2_kernel", "ln2"), gen_ffn(), gen_ln("fin_kernel", "fin")]
    ref = open("cdna_kernels/%s.s.ref" % NAME).read().split("\n")
    head = [l for l in ref if l.startswith(";") and "@launch" not in l and "Override launch" not in l and "grid=ceil" not in l]
    out = "\n".join(head) + "\n"
    for em, launch in ks: out += "; @launch kernel=%s %s\n" % (em.name, launch)
    out += '.amdgcn_target "amdgcn-amd-amdhsa--gfx950"\n.text\n'
    descs = ""
    for em, launch in ks:
        b, d = kernel_text(em)
        out += b; descs += d
        print(em.name, "vgpr", em.maxv, "sgpr", em.maxs, "lines", len(em.lines), "mfma", em.n_mfma)
    out += '.section .rodata,"a"\n.p2align 6\n' + descs.replace(".amdhsa_kernel", ".p2align 6\n.amdhsa_kernel").replace(".end_.p2align 6\n.amdhsa_kernel", ".end_amdhsa_kernel")
    open(path, "w").write(out)
if __name__ == "__main__":
    build(sys.argv[1] if len(sys.argv) > 1 else "cdna_kernels/%s.s" % NAME)
```

```python
import re

TRANS = ("v_exp_f32", "v_log_f32", "v_rcp_f32", "v_rsq_f32", "v_sqrt_f32", "v_sin_f32", "v_cos_f32")

def regs_of(op):
    op = op.strip()
    neg = re.match(r"^-?(abs\()?(.*?)\)?$", op)
    o = op.lstrip("-")
    if o.startswith("abs(") or o.startswith("|"):
        o = o[4:-1] if o.startswith("abs(") else o[1:-1]
    m = re.match(r"^([vsa])(\d+)$", o)
    if m: return [(m.group(1), int(m.group(2)))]
    m = re.match(r"^([vsa])\[(\d+):(\d+)\]$", o)
    if m: return [(m.group(1), i) for i in range(int(m.group(2)), int(m.group(3)) + 1)]
    if o in ("vcc", "exec", "m0", "scc"): return [("x", o)]
    if o in ("vcc_lo", "vcc_hi"): return [("x", "vcc")]
    return []

def split_ops(s):
    out, depth, cur = [], 0, ""
    for ch in s:
        if ch in "[(": depth += 1
        if ch in "])": depth -= 1
        if ch == "," and depth == 0:
            out.append(cur.strip()); cur = ""
        else: cur += ch
    if cur.strip(): out.append(cur.strip())
    return out

class Emit:
    def __init__(self, name):
        self.name = name
        self.lines = []
        self.pos = 0
        self.vm_iss = 0; self.vm_done = 0
        self.lg_iss = 0; self.lg_done = 0
        self.pend = {}
        self.w_valu = {}
        self.w_trans = {}
        self.w_mfma = {}
        self.r_mfma_c = {}
        self.st_data = {}
        self.w_sgpr_valu = {}
        self.m0_w = -100
        self.smem_pending = False
        self.maxv = 0; self.maxs = 0
        self.n_mfma = 0
    def raw(self, text, states=1):
        self.lines.append("    " + text); self.pos += states
    def comment(self, t): self.lines.append("    ; " + t)
    def label(self, l): self.lines.append(l + ":")
    def nop(self, n):
        while n > 0:
            k = min(n, 16); self.raw("s_nop %d" % (k - 1), k); n -= k
    def need(self, since_pos, states):
        have = self.pos - since_pos - 1
        if have < states: self.nop(states - have)
    def wait_vm_seq(self, seq):
        if seq <= self.vm_done: return
        n = self.vm_iss - seq
        assert n <= 63, n
        self.raw("s_waitcnt vmcnt(%d)" % n); self.vm_done = seq
    def wait_lg_seq(self, seq):
        if seq <= self.lg_done: return
        n = self.lg_iss - seq
        if self.smem_pending: n = 0
        if n > 15: n = 15;
        self.raw("s_waitcnt lgkmcnt(%d)" % n); self.lg_done = self.lg_iss - n
        if n == 0: self.smem_pending = False
        assert self.lg_done >= seq
    def wait_all_lg(self):
        if self.lg_done < self.lg_iss or self.smem_pending:
            self.raw("s_waitcnt lgkmcnt(0)"); self.lg_done = self.lg_iss; self.smem_pending = False
    def wait_all_vm(self): self.wait_vm_seq(self.vm_iss)
    def _touch(self, regs):
        vm = lg = 0
        for r in regs:
            p = self.pend.get(r)
            if p:
                if p[0] == "vm": vm = max(vm, p[1])
                else: lg = max(lg, p[1])
        if vm > self.vm_done and lg > self.lg_done and not self.smem_pending and self.lg_iss - lg <= 15:
            self.raw("s_waitcnt vmcnt(%d) lgkmcnt(%d)" % (self.vm_iss - vm, self.lg_iss - lg))
            self.vm_done = vm; self.lg_done = lg
        if vm: self.wait_vm_seq(vm)
        if lg: self.wait_lg_seq(lg)
        for r in regs: self.pend.pop(r, None)
    def _track(self, regs):
        for t, n in regs:
            if t == "v": self.maxv = max(self.maxv, n + 1)
            if t == "s": self.maxs = max(self.maxs, n + 1)
    def I(self, text):
        text = text.strip()
        mn, _, rest = text.partition(" ")
        ops = split_ops(rest)
        mods = ""
        if ops:
            last = ops[-1].split()
            ops[-1] = last[0]; mods = " ".join(last[1:])
        R = [regs_of(o) for o in ops]
        for r in R: self._track(r)
        flat = lambda L: [x for r in L for x in r]
        if mn.startswith("v_mfma"):
            D, A, B, C = R[0], R[1], R[2], R[3]
            self._touch(D + A + B + C)
            for r in A + B + C:
                if r in self.w_valu: self.need(self.w_valu[r], 2)
            for r in A + B:
                if r in self.w_mfma: self.need(self.w_mfma[r][0], self.w_mfma[r][3])
            for r in C:
                if r in self.w_mfma:
                    p, db, ds, raw, cov = self.w_mfma[r]
                    if not (db == C[0] and ds == len(C)): self.need(p, cov)
            for r in D:
                if r in self.w_mfma and r not in C:
                    self.need(self.w_mfma[r][0], self.w_mfma[r][3])
            self.raw(text); p = self.pos - 1
            raw, cov, war = (8, 6, 3) if "16x16x32" in mn else (12, 10, 7)
            for r in D: self.w_mfma[r] = (p, D[0], len(D), raw, cov); self.w_valu.pop(r, None); self.w_trans.pop(r, None)
            for r in C: self.r_mfma_c[r] = (p, war)
            self.n_mfma += 1
            return
        if mn.startswith("ds_read") or mn.startswith("ds_bpermute") or mn.startswith("ds_swizzle"):
            D = R[0]; S = flat(R[1:])
            self._touch(D + S)
            for r in D + S:
                if r in self.w_mfma: self.need(self.w_mfma[r][0], self.w_mfma[r][3])
            for r in D:
                if r in self.r_mfma_c: self.need(*self.r_mfma_c[r])
            self.raw(text); self.lg_iss += 1
            for r in D: self.pend[r] = ("lg", self.lg_iss); self.w_valu.pop(r, None); self.w_mfma.pop(r, None); self.w_trans.pop(r, None)
            return self.lg_iss
        if mn.startswith("ds_write") or mn.startswith("ds_add"):
            S = flat(R)
            self._touch(S)
            for r in S:
                if r in self.w_mfma: self.need(self.w_mfma[r][0], self.w_mfma[r][3])
            self.raw(text); self.lg_iss += 1
            return self.lg_iss
        if mn.startswith("buffer_load") or mn.startswith("global_load"):
            islds = " lds" in (" " + mods) or "_lds_" in mn
            if islds: D = []; S = flat(R)
            else: D = R[0]; S = flat(R[1:])
            self._touch(D + S)
            for r in D + S:
                if r in self.w_mfma: self.need(self.w_mfma[r][0], self.w_mfma[r][3])
                if r in self.w_sgpr_valu: self.need(self.w_sgpr_valu[r], 5)
            for r in D:
                if r in self.st_data: self.need(self.st_data[r], 2)
                if r in self.r_mfma_c: self.need(*self.r_mfma_c[r])
            if islds: self.need(self.m0_w, 1)
            self.raw(text); self.vm_iss += 1
            for r in D: self.pend[r] = ("vm", self.vm_iss); self.w_valu.pop(r, None); self.w_mfma.pop(r, None); self.w_trans.pop(r, None)
            return self.vm_iss
        if mn.startswith("buffer_store") or mn.startswith("global_store") or mn.startswith("buffer_atomic") or mn.startswith("global_atomic"):
            S = flat(R)
            self._touch(S)
            for r in S:
                if r in self.w_mfma: self.need(self.w_mfma[r][0], self.w_mfma[r][3])
                if r in self.w_sgpr_valu: self.need(self.w_sgpr_valu[r], 5)
            self.raw(text); self.vm_iss += 1
            for r in R[0] + (R[1] if mn.startswith("global") else []): self.st_data[r] = self.pos - 1
            if "atomic" in mn and "sc0" in mods:
                for r in R[0]: self.pend[r] = ("vm", self.vm_iss)
            return self.vm_iss
        if mn.startswith("s_load") or mn.startswith("s_memtime") or mn.startswith("s_memrealtime"):
            self.raw(text); self.lg_iss += 1; self.smem_pending = True
            for r in R[0]: self.pend[r] = ("lg", self.lg_iss)
            return
        if mn.startswith("s_"):
            S = flat(R)
            self._touch(S)
            for r in S:
                if r in self.w_sgpr_valu and not mn.startswith("s_cbranch"): self.need(self.w_sgpr_valu[r], 1)
            self.raw(text)
            if R and ("x", "m0") in R[0] and not mn.startswith("s_cmp"): self.m0_w = self.pos - 1
            if R and not mn.startswith("s_cmp") and not mn.startswith("s_cbranch"):
                for r in R[0]: self.w_sgpr_valu.pop(r, None)
            return
        if mn.startswith("v_"):
            isperm = mn.startswith("v_permlane")
            iscmp = mn.startswith("v_cmp")
            isrl = mn.startswith("v_readfirstlane") or mn.startswith("v_readlane")
            isdpp = "dpp" in mn or any(k in mods for k in ("row_", "quad_perm", "wave_"))
            D = list(R[0]); S = flat(R[1:])
            if mn.startswith("v_add_co") or mn.startswith("v_addc_co") or mn.startswith("v_sub_co"):
                D = R[0] + R[1]; S = flat(R[2:])
            if isperm: D = R[0] + R[1]; S = R[0] + R[1]
            if mn.startswith("v_fmac") or mn.startswith("v_pk_fmac") or isdpp: S = S + R[0]
            if mn.startswith("v_cndmask") and len(R) == 3: S = S + [("x", "vcc")]
            self._touch(D + S)
            for r in D + S:
                if r in self.w_mfma: self.need(self.w_mfma[r][0], self.w_mfma[r][3])
            for r in D:
                if r in self.r_mfma_c: self.need(*self.r_mfma_c[r])
                if r in self.st_data: self.need(self.st_data[r], 2)
            base = mn.replace("_e32", "").replace("_e64", "")
            for r in S:
                if r in self.w_trans and base not in TRANS: self.need(self.w_trans[r], 1)
                if (isperm or isdpp) and r in self.w_valu: self.need(self.w_valu[r], 2)
                if isrl and r in self.w_valu: self.need(self.w_valu[r], 1)
                if r in self.w_sgpr_valu: self.need(self.w_sgpr_valu[r], 2)
            self.raw(text); p = self.pos - 1
            for r in D:
                if r[0] in ("v", "a"):
                    self.w_valu[r] = p; self.w_mfma.pop(r, None)
                    if base in TRANS: self.w_trans[r] = p
                    else: self.w_trans.pop(r, None)
                else:
                    self.w_sgpr_valu[r] = p
            return
        raise ValueError("unknown instr " + text)
    def barrier(self):
        self.raw("s_barrier")
    def fence_hazards(self):
        self.nop(16)
    def text(self): return "\n".join(self.lines)

def kernel_text(em, vgpr=None, sgpr=None, wg_y=False):
    v = vgpr or em.maxv
    v = (v + 7) // 8 * 8
    s = sgpr or max(em.maxs, 16)
    body = f""".globl {em.name}
.p2align 8
.type {em.name},@function
{em.name}:
{em.text()}
"""
    desc = f""".amdhsa_kernel {em.name}
  .amdhsa_next_free_vgpr {v}
  .amdhsa_next_free_sgpr {s}
  .amdhsa_accum_offset {v}
  .amdhsa_group_segment_fixed_size 0
  .amdhsa_kernarg_size 112
  .amdhsa_user_sgpr_count 2
  .amdhsa_user_sgpr_kernarg_segment_ptr 1
  .amdhsa_system_sgpr_workgroup_id_x 1
  .amdhsa_float_denorm_mode_32 3
  .amdhsa_float_denorm_mode_16_64 3
.end_amdhsa_kernel
"""
    return body, desc
```

```python
from gen_common import *
LOG2E = 1.4426950408889634
THR = float(2 ** 64)
STAMP = False
STMOD = ''
LDMOD = ''
PRIO = True
EXP = set()
WS_DBG = 0x3000000
UNIT = 8192
SPARE = 16 * UNIT

class Stamper:
    def __init__(self, em, region): self.em = em; self.n = 0; self.region = region; self.names = []
    def __call__(self, name=""):
        if not STAMP: return
        em = self.em
        em.I("s_memtime s[66:67]")
        em.wait_all_lg()
        em.I("v_writelane_b32 v0, s66, %d" % self.n)
        self.names.append(name); self.n += 1
    def first(self):
        if not STAMP: return
        self.em.I("s_memtime s[64:65]")
        self.em.I("s_memrealtime s[72:73]")
    def commit_first(self):
        if not STAMP: return
        self.em.wait_all_lg()
        self.em.I("v_writelane_b32 v0, s64, %d" % self.n); self.n += 1; self.names.append("entry")
    def finish(self, HOFF):
        if not STAMP: return
        em = self.em
        self("end")
        em.I("s_memrealtime s[74:75]")
        em.wait_all_lg()
        em.I("v_writelane_b32 v0, s72, 62")
        em.I("v_writelane_b32 v0, s74, 63")
        make_srd(em, 68, 48, WS_DBG + 0x200000, off_const=WS_DBG + self.region * 0x80000)
        em.I("s_lshl_b32 s66, s2, 3"); em.I("s_add_u32 s66, s66, s32"); em.I("s_lshl_b32 s66, s66, 8")
        em.I("v_lshrrev_b32 v2, 2, v%d" % HOFF)
        em.I("buffer_store_dword v0, v2, s[68:71], s66 offen")
        open("stamps_%d.txt" % self.region, "w").write("\n".join(self.names))

class Addr:
    def __init__(self, reg): self.reg = reg; self.base = 0
    def off(self, em, absoff):
        rel = absoff - self.base
        if rel < 0 or rel > 65535:
            nb = (absoff // 65536) * 65536
            d = nb - self.base
            if d > 0: em.I("v_add_u32 v%d, 0x%x, v%d" % (self.reg, d, self.reg))
            else: em.I("v_subrev_u32 v%d, 0x%x, v%d" % (self.reg, -d, self.reg))
            self.base = nb; rel = absoff - nb
        return rel

class Op:
    def __init__(self, reads, mf, units, chunk, nfill=0):
        self.reads = reads
        self.mf = mf
        self.units = units if isinstance(units, (list, tuple)) else [units]
        self.chunk = chunk
        self.extra = []
        self.pre = []; self.post = []
        self.nfill = nfill

class Pipe:
    def __init__(self, em, af_base, R, st):
        self.em = em; self.af = af_base; self.R = R
        self.ops = []; self.fill = []; self.marks = set()
        self.units = []
        self.tok = {}
        self.next_dma = 0; self.cur = -1; self.st = st
        self.bar_hooks = {}
        self.landed = -1
    def unit(self, addr, dma, size=UNIT, last=None):
        self.units.append(dict(addr=addr, size=size, dma=dma, last=last if last is not None else -1))
        return len(self.units) - 1
    def add(self, op): self.ops.append(op)
    def finalize(self):
        for op in self.ops:
            for u in op.units: self.units[u]["last"] = max(self.units[u]["last"], op.chunk)
        for u, U in enumerate(self.units):
            fa = -1
            for p in range(u):
                P = self.units[p]
                if P["addr"] < U["addr"] + U["size"] and U["addr"] < P["addr"] + P["size"]: fa = max(fa, P["last"])
            U["free_after"] = fa
    def dma_one(self):
        u = self.next_dma
        if u >= len(self.units): return False
        U = self.units[u]
        if U["free_after"] >= 0 and U["free_after"] >= self.cur: return False
        if U["dma"] is None or "nodma" in EXP: self.tok[u] = self.em.vm_iss
        else: self.tok[u] = U["dma"](U["addr"])
        self.next_dma += 1
        if U["dma"] is None: return self.dma_one()
        return True
    def start_chunk(self, c, i):
        em = self.em
        assert c == self.cur + 1, (c, self.cur)
        em.comment("---- chunk %d" % c)
        for f in self.bar_hooks.get(("pre", c), []): f()
        must = -1; j = i
        while j < len(self.ops) and self.ops[j].chunk == c: must = max([must] + list(self.ops[j].units)); j += 1
        want = must
        for k in range(j, min(j + self.R - 1, len(self.ops))): want = max([want] + list(self.ops[k].units))
        while self.next_dma <= must: assert self.dma_one() or self.next_dma > must, ("dma not issuable", self.next_dma, c)
        if c == 0: want = must
        last = max(min(want, self.next_dma - 1), self.landed)
        self.landed = last
        if c in self.stampset: self.st("pre%d" % c)
        if last >= 0: em.wait_vm_seq(self.tok[last])
        if "nobar" not in EXP: em.barrier()
        self.cur = c
        for f in self.bar_hooks.get(("post", c), []): f()
    def issue_read(self, i, half):
        op = self.ops[i]; em = self.em
        if half == 0:
            for f in op.extra: f()
        d = self.af + 4 * (i % self.R) + 2 * half
        kind, a, off = op.reads[half]
        rel = a.off(em, off)
        ins = "ds_read_b64_tr_b16" if kind == "tr" else "ds_read_b64"
        if "nolds" not in EXP: em.I("%s %s, v%d offset:%d" % (ins, vr(d, 2), a.reg, rel))
    def can_read(self, x): return max(self.ops[x].units) <= self.landed
    @staticmethod
    def weight(f):
        if callable(f): return 1
        return 2 if f.split()[0] in ("v_exp_f32", "v_rcp_f32") else 1
    def run_fill(self, n):
        full = n
        while n > 0 and self.fill:
            f = self.fill[0]
            if isinstance(f, tuple): self.marks.add(f[1]); self.fill.pop(0); continue
            w = self.weight(f)
            if w > n and n < full: break
            self.fill.pop(0)
            if callable(f): f()
            else: self.em.I(f)
            n -= w
    def flush_fill(self): self.run_fill(10 ** 9)
    def ensure(self, mark):
        while mark not in self.marks:
            assert self.fill, mark
            if isinstance(self.fill[0], tuple): self.marks.add(self.fill.pop(0)[1])
            else: self.run_fill(1)
    def run(self, dma_every=2):
        em = self.em; n = len(self.ops); nxt = 0; since = 0
        cnt = {}
        for op in self.ops: op.cidx = cnt.get(op.chunk, 0); cnt[op.chunk] = op.cidx + 1
        curprio = None
        for i, op in enumerate(self.ops):
            c = op.chunk
            if PRIO:
                pr = 3 - (4 * op.cidx) // cnt[c]
                if pr != curprio: em.raw("s_setprio %d" % pr); curprio = pr
            assert c >= self.cur, (i, c, self.cur)
            while c > self.cur: self.start_chunk(self.cur + 1, i); since = dma_every - 1
            for a in op.pre: a()
            while nxt < 2 * min(n, i + self.R - 1) and self.can_read(nxt // 2):
                self.issue_read(nxt // 2, nxt % 2); nxt += 1
            assert nxt >= 2 * (i + 1), (i, op.units, self.landed)
            d = self.af + 4 * (i % self.R)
            for k, (D, B, C) in enumerate(op.mf):
                Cs = C if isinstance(C, str) else vr(C, 4)
                em.I("v_mfma_f32_16x16x32_bf16 %s, %s, %s, %s" % (vr(D, 4), vr(d, 4), vr(B, 4), Cs))
                if nxt < 2 * min(n, i + self.R) and self.can_read(nxt // 2):
                    self.issue_read(nxt // 2, nxt % 2); nxt += 1
                self.run_fill(op.nfill)
            since += 1
            if since >= dma_every:
                since = 0
                self.dma_one()
            for a in op.post: a()

def wg_decode(em):
    em.I("v_lshrrev_b32 v1, 6, v0")
    em.I("v_readfirstlane_b32 s32, v1")
    em.I("s_and_b32 s33, s2, 7")
    em.I("s_lshl_b32 s33, s33, 1")
    em.I("s_bfe_u32 s34, s2, 0x10003")
    em.I("s_add_u32 s33, s33, s34")
    em.I("s_lshr_b32 s34, s2, 4")
    em.I("s_and_b32 s35, s32, 3")
    em.I("s_lshr_b32 s36, s32, 2")
    em.I("s_lshl_b32 s37, s34, 2")
    em.I("s_add_u32 s37, s37, s35")

class SRot:
    def __init__(self, lo=56, n=8): self.lo = lo; self.n = n; self.i = 0
    def __call__(self):
        self.i = (self.i + 1) % self.n
        return self.lo + self.i

def pat256_src(em, dst, L, t0, t1, rowstride, wrow_sgpr_bytes):
    I = em.I
    I("v_lshrrev_b32 v%d, 4, v%d" % (t0, L))
    I("s_and_b32 s50, s32, 1"); I("s_lshl_b32 s50, s50, 2")
    I("v_add_u32 v%d, s50, v%d" % (t1, t0))
    I("v_lshlrev_b32 v%d, 1, v%d" % (t1, t1))
    I("v_and_b32 v%d, 15, v%d" % (dst, L))
    I("v_xor_b32 v%d, v%d, v%d" % (dst, dst, t1))
    I("v_lshlrev_b32 v%d, 4, v%d" % (dst, dst))
    I("s_mov_b32 s50, %d" % rowstride)
    I("v_mul_lo_u32 v%d, v%d, s50" % (t0, t0))
    I("v_add_u32 v%d, v%d, v%d" % (dst, dst, t0))
    I("v_add_u32 v%d, s%d, v%d" % (dst, wrow_sgpr_bytes, dst))

def pat128_src(em, dst, L, t0, t1, rowstride, wrow_sgpr_bytes):
    I = em.I
    I("v_lshrrev_b32 v%d, 3, v%d" % (t0, L))
    I("v_bfe_u32 v%d, v%d, 1, 2" % (t1, t0))
    I("v_lshlrev_b32 v%d, 1, v%d" % (t1, t1))
    I("v_and_b32 v%d, 7, v%d" % (dst, L))
    I("v_xor_b32 v%d, v%d, v%d" % (dst, dst, t1))
    I("v_lshlrev_b32 v%d, 4, v%d" % (dst, dst))
    I("s_mov_b32 s50, %d" % rowstride)
    I("v_mul_lo_u32 v%d, v%d, s50" % (t0, t0))
    I("v_add_u32 v%d, v%d, v%d" % (dst, dst, t0))
    I("v_add_u32 v%d, s%d, v%d" % (dst, wrow_sgpr_bytes, dst))

def rd256_addr(em, dst, L, t0, t1, q_sgpr=None, q_const=0):
    I = em.I
    I("v_lshrrev_b32 v%d, 2, v%d" % (t0, L))
    I("v_and_b32 v%d, 7, v%d" % (t1, t0))
    if q_sgpr is not None: I("v_xor_b32 v%d, s%d, v%d" % (t1, q_sgpr, t1))
    if q_const: I("v_xor_b32 v%d, %d, v%d" % (t1, q_const, t1))
    I("v_lshlrev_b32 v%d, 5, v%d" % (t1, t1))
    I("v_lshl_add_u32 v%d, v%d, 8, v%d" % (t1, t0, t1))
    I("v_and_b32 v%d, 3, v%d" % (t0, L))
    I("v_lshl_add_u32 v%d, v%d, 3, v%d" % (dst, t0, t1))

def rd128_addr(em, dst, L, t0, t1, q_sgpr=None, q_const=0):
    I = em.I
    I("v_lshrrev_b32 v%d, 2, v%d" % (t0, L))
    I("v_bfe_u32 v%d, v%d, 1, 2" % (t1, t0))
    if q_sgpr is not None: I("v_xor_b32 v%d, s%d, v%d" % (t1, q_sgpr, t1))
    if q_const: I("v_xor_b32 v%d, %d, v%d" % (t1, q_const, t1))
    I("v_lshlrev_b32 v%d, 5, v%d" % (t1, t1))
    I("v_lshl_add_u32 v%d, v%d, 7, v%d" % (t1, t0, t1))
    I("v_and_b32 v%d, 3, v%d" % (t0, L))
    I("v_lshl_add_u32 v%d, v%d, 3, v%d" % (dst, t0, t1))

def xg_reduce(op, v, t):
    return ["v_mov_b32 v%d, v%d" % (t, v), "v_permlane16_swap_b32 v%d, v%d" % (v, t), "%s v%d, v%d, v%d" % (op, v, v, t),
            "v_mov_b32 v%d, v%d" % (t, v), "v_permlane32_swap_b32 v%d, v%d" % (v, t), "%s v%d, v%d, v%d" % (op, v, v, t)]
```

```python
from gen_common import *
import gen2
from gen2 import *

def mk_dma(em, sreg, vo, srd, so=None, so_sgpr=None, so_add=0, mod=None):
    def f(lds):
        s = sreg()
        if so_sgpr is not None: em.I("s_add_u32 s%d, s%d, 0x%x" % (s, so_sgpr, so_add))
        else: em.I("s_mov_b32 s%d, 0x%x" % (s, so))
        em.I("s_add_u32 m0, s39, 0x%x" % lds)
        return em.I("buffer_load_dwordx4 v%d, s[%d:%d], s%d offen%s lds" % (vo, srd, srd + 3, s, gen2.LDMOD if mod is None else mod))
    return f

def z_store_fn(em, sreg, ZA, ZP, HOFF, S_P):
    I = em.I
    def z_store(G):
        za = ZA[G % 2]; out = []
        npair = 2 if G < 4 else 1
        for p in range(npair):
            for nt in range(2):
                d = ZP + 8 * p + 4 * nt
                for i in range(2):
                    a = za + 8 * (2 * p + i) + 4 * nt
                    out.append("v_cvt_pk_bf16_f32 v%d, v%d, v%d" % (d + 2 * i, a, a + 1))
                    out.append("v_cvt_pk_bf16_f32 v%d, v%d, v%d" % (d + 2 * i + 1, a + 2, a + 3))
            def stf(p=p):
                s = sreg()
                I("s_lshl_b32 s%d, s36, %d" % (s, 12 if G < 4 else 11))
                I("s_add_u32 s%d, s%d, %d" % (s, s, (4 * G + p) * 2048))
                for nt in range(2 if "nost" not in gen2.EXP else 0):
                    I("buffer_store_dwordx4 %s, v%d, s[%d:%d], s%d offen offset:%d%s" % (vr(ZP + 8 * p + 4 * nt, 4), HOFF, S_P, S_P + 3, s, 1024 * nt, gen2.STMOD))
            out.append(stf)
        return out
    return z_store

def h_src(em, VH, HOFF):
    I = em.I
    I("s_lshr_b32 s50, s32, 1"); I("s_mul_i32 s50, s50, 36864")
    I("s_and_b32 s51, s32, 1"); I("s_lshl_b32 s51, s51, 10"); I("s_add_u32 s50, s50, s51")
    I("v_add_u32 v%d, s50, v%d" % (VH, HOFF))

def gen_attn():
    em = Emit("attn_kernel")
    I = em.I
    I("s_cmp_ge_u32 s2, 256")
    I("s_cbranch_scc1 L_attn_end")
    st = Stamper(em, 0); st.first()
    load_ptr(em, 40, "wq"); load_ptr(em, 48, "ws"); load_ptr(em, 42, "k"); load_ptr(em, 44, "v"); load_ptr(em, 46, "wo")
    wg_decode(em)
    S_WQ, S_K, S_V, S_WO, S_H, S_P = 8, 12, 16, 20, 24, 28
    HOFF, VQ, VK, VV, VWO, VWL, L = 1, 2, 3, 4, 5, 6, 7
    AQr = 8; AF = 16; R = 4
    Ls, PS, TM, ET = 32, 34, 36, 40
    QACC = 144
    QB = 112; OACC = 144; Sb = (48, 64); Pb = (80, 88); NEGM = 96
    HBr = (48, 56)
    AKr = 208; AOo = 216; AOp = 220; ALo = 224; ALp = 226; XW = 228; XR = 229; VH = 230; HR = 231; AVr = 232
    OBo = 48; OBp = 80; ZA = (112, 144); ZP = 176
    t0, t1 = 36, 37
    NS = 20
    sreg = SRot()
    pipe = Pipe(em, AF, R, st); pipe.stampset = {0, 1, 2, 4, 6, 8, 9, 10, 12, 14, 16, 17, 18, 20, 22, 24}
    I("v_and_b32 v%d, 63, v0" % L)
    I("v_lshlrev_b32 v%d, 4, v%d" % (HOFF, L))
    I("s_lshl_b32 s39, s32, 10")
    I("s_lshl_b32 s51, s32, 15")
    pat256_src(em, VQ, L, t0, t1, 8192, 51)
    h_src(em, VH, HOFF)
    I("s_lshl_b32 s50, s33, 9")
    make_srd(em, S_WQ, 40, 576 * 8192, off_sgpr=50)
    I("s_mul_i32 s50, s34, %d" % (4 * 36864))
    make_srd(em, S_H, 48, WS_H + FRAG, off_const=WS_H, off_sgpr=50)
    slot = [0]
    def nxt_addr(n=1):
        a = (slot[0] % NS) * UNIT; slot[0] += n; return a
    uH, uW = {}, {}
    for c in range(9):
        for ks in (2 * c, 2 * c + 1): uH[ks] = pipe.unit(nxt_addr(), mk_dma(em, sreg, VH, S_H, ks * 2048, mod=""))
        for ks in (2 * c, 2 * c + 1):
            for hd in range(2): uW[ks, hd] = pipe.unit(nxt_addr(), mk_dma(em, sreg, VQ, S_WQ, ks * 32 * 8192 + hd * 256))
    kv_chunk = {9: [("K", 0), ("K", 1), ("K", 2), ("V", 0)], 16: [("K", 15), ("V", 13), ("V", 14), ("V", 15)]}
    for j in range(1, 7): kv_chunk[9 + j] = [("K", 2 * j + 1), ("V", 2 * j - 1), ("K", 2 * j + 2), ("V", 2 * j)]
    uKV, cKV = {}, {}
    for c in range(9, 17):
        for kind, tile in kv_chunk[c]:
            f = mk_dma(em, sreg, VK, S_K, tile * 8192) if kind == "K" else mk_dma(em, sreg, VV, S_V, tile * 8192)
            uKV[kind, tile] = pipe.unit(nxt_addr(), f); cKV[kind, tile] = c
    XBASE = nxt_addr(8)
    assert XBASE + 8 * UNIT <= NS * UNIT
    uX = pipe.unit(XBASE, None, size=8 * UNIT, last=17)
    while slot[0] % 4: slot[0] += 1
    uO = {}
    for G in range(4):
        for half in range(2):
            for head in range(2):
                for sl in range(2):
                    s_ = 2 * half + sl
                    uO[G, head, s_] = pipe.unit(nxt_addr(), mk_dma(em, sreg, VWO, S_WO, (head * 128 + 32 * s_) * 1152 + G * 256))
    uL = [pipe.unit(nxt_addr(), mk_dma(em, sreg, VWL, S_WO, (y * 64) * 1152 + 1024)) for y in range(4)]
    ua = lambda u: pipe.units[u]["addr"]

    AQ = [Addr(AQr + q) for q in range(8)]; AV = [Addr(AVr + q) for q in range(8)]
    AK = [[Addr(AKr + 2 * s + rd) for rd in range(2)] for s in range(4)]
    AH = Addr(HR)
    Aoo = [Addr(AOo + i) for i in range(4)]; Aop = [Addr(AOp + i) for i in range(4)]
    Alo = [Addr(ALo + i) for i in range(2)]; Alp = [Addr(ALp + i) for i in range(2)]

    def setup_rest():
        I("s_lshl_b32 s50, s33, 19")
        make_srd(em, S_K, 42, 16 * 524288, off_const=1536 * 256, off_sgpr=50)
        make_srd(em, S_V, 44, 16 * 524288, off_const=1536 * 256, off_sgpr=50)
        I("s_mul_i32 s50, s33, %d" % (256 * 1152))
        make_srd(em, S_WO, 46, 4096 * 1152, off_sgpr=50)
        I("s_mul_i32 s50, s37, 36864")
        I("s_mul_i32 s51, s33, 0x%x" % FRAG)
        I("s_add_u32 s50, s50, s51")
        make_srd(em, S_P, 48, WS_END, off_const=WS_P, off_sgpr=50)
        I("s_mov_b32 s52, %s" % f32(THR))
        I("s_mov_b32 s53, %s" % f32(LOG2E / (128 ** 0.5)))
        pat256_src(em, VV, L, t0, t1, 256, 39)
        I("s_mul_i32 s51, s32, %d" % (4 * 1152))
        pat256_src(em, VWO, L, t0, t1, 1152, 51)
        I("s_mul_i32 s51, s32, %d" % (8 * 1152))
        pat128_src(em, VWL, L, t0, t1, 1152, 51)
        I("v_lshrrev_b32 v%d, 4, v%d" % (t0, L))
        I("s_lshl_b32 s50, s35, 2")
        I("v_add_u32 v%d, s50, v%d" % (t1, t0))
        I("v_and_b32 v%d, 15, v%d" % (VK, L))
        I("v_xor_b32 v%d, v%d, v%d" % (VK, VK, t1))
        I("v_lshlrev_b32 v%d, 4, v%d" % (VK, VK))
        I("v_lshl_add_u32 v%d, v%d, 8, v%d" % (VK, t0, VK))
        I("v_add_u32 v%d, s39, v%d" % (VK, VK))
        rd256_addr(em, AVr, L, t0, t1)
        I("s_lshl_b32 s54, s36, 13")
        I("v_add_u32 v%d, s54, v%d" % (AQr, AVr))
        for q in range(1, 8):
            I("v_xor_b32 v%d, %d, v%d" % (AQr + q, 32 * q, AQr)); I("v_xor_b32 v%d, %d, v%d" % (AVr + q, 32 * q, AVr))
        I("s_lshl_b32 s50, s35, 11")
        I("v_add_u32 v%d, s50, v%d" % (HR, HOFF))
        I("v_and_b32 v%d, 15, v%d" % (t0, L)); I("v_lshrrev_b32 v%d, 5, v%d" % (t1, L))
        I("v_xor_b32 v%d, v%d, v%d" % (t1, t1, t0)); I("v_lshlrev_b32 v%d, 4, v%d" % (t1, t1))
        I("v_lshl_add_u32 v%d, v%d, 8, v%d" % (t1, t0, t1)); I("v_bfe_u32 v%d, v%d, 4, 1" % (t0, L))
        I("v_lshl_add_u32 v%d, v%d, 3, v%d" % (AKr, t0, t1))
        for i in range(1, 8): I("v_xor_b32 v%d, %d, v%d" % (AKr + i, 32 * i, AKr))
        I("s_lshl_b32 s55, s36, 7")
        I("v_xor_b32 v%d, s55, v%d" % (AOo, AVr))
        I("s_lshl_b32 s50, s36, 14"); I("s_xor_b32 s51, s50, 16384")
        I("v_add_u32 v%d, s51, v%d" % (AOp, AOo))
        I("v_add_u32 v%d, s50, v%d" % (AOo, AOo))
        for i in range(1, 4):
            I("v_xor_b32 v%d, %d, v%d" % (AOo + i, 32 * i, AOo)); I("v_xor_b32 v%d, %d, v%d" % (AOp + i, 32 * i, AOp))
        I("s_lshl_b32 s55, s36, 1")
        rd128_addr(em, ALo, L, t0, t1, q_sgpr=55)
        I("v_add_u32 v%d, s51, v%d" % (ALp, ALo))
        I("v_add_u32 v%d, s50, v%d" % (ALo, ALo))
        I("v_xor_b32 v%d, 32, v%d" % (ALo + 1, ALo)); I("v_xor_b32 v%d, 32, v%d" % (ALp + 1, ALp))
        I("s_lshl_b32 s50, s32, 13"); I("s_add_u32 s50, s50, %d" % XBASE)
        I("v_add_u32 v%d, s50, v%d" % (XW, HOFF))
        I("s_xor_b32 s50, s32, 4"); I("s_lshl_b32 s50, s50, 13"); I("s_add_u32 s50, s50, %d" % XBASE)
        I("v_add_u32 v%d, s50, v%d" % (XR, HOFF))

    def q_convert(q):
        out = []
        for nt in range(2):
            a = QACC + 8 * q + 4 * nt
            for r in range(4): out.append("v_mul_f32 v%d, s53, v%d" % (a + r, a + r))
            d = QB + 8 * (q // 2) + 4 * nt + 2 * (q % 2)
            out.append("v_cvt_pk_bf16_f32 v%d, v%d, v%d" % (d, a, a + 1))
            out.append("v_cvt_pk_bf16_f32 v%d, v%d, v%d" % (d + 1, a + 2, a + 3))
        out.append(("mark", "q%d" % q))
        return out
    for ks in range(18):
        base = ua(uW[ks, 0]); hb = HBr[ks % 2]
        for q in range(8):
            reads = [("tr", AQ[q], base + rd * 4096) for rd in range(2)]
            mf = [(QACC + 8 * q + 4 * nt, hb + 4 * nt, "0" if ks == 0 else QACC + 8 * q + 4 * nt) for nt in range(2)]
            op = Op(reads, mf, [uW[ks, 0], uW[ks, 1], uH[ks]], ks // 2, nfill=2)
            if q == 0:
                def hread(ks=ks, hb=hb):
                    for nt in range(2):
                        rel = AH.off(em, ua(uH[ks]) + 1024 * nt)
                        I("ds_read_b128 %s, v%d offset:%d" % (vr(hb + 4 * nt, 4), HR, rel))
                op.extra.append(hread)
            if ks == 17 and q >= 1: op.post.append(lambda q=q: pipe.fill.extend(q_convert(q - 1)))
            if ks == 17 and q == 7: op.post.append(lambda: pipe.fill.extend(q_convert(7)))
            pipe.add(op)
    def qk_ops(tile, Sreg, cinit, smajor=False):
        u = uKV["K", tile]; loc = ua(u)
        order = [(kt, s) for kt in range(2) for s in range(4)] if not smajor else [(kt, s) for s in range(4) for kt in range(2)]
        ops = []
        for kt, s in order:
            reads = [("b64", AK[s][rd], loc + kt * 4096) for rd in range(2)]
            mf = []
            for nt in range(2):
                D = Sreg + 8 * kt + 4 * nt
                C = D if s > 0 else (cinit if isinstance(cinit, str) else cinit + 4 * nt)
                mf.append((D, QB + 8 * s + 4 * nt, C))
            o = Op(reads, mf, u, cKV["K", tile], nfill=2); o.s = s
            ops.append(o)
        return ops
    def pv_ops(tile, Preg, first):
        u = uKV["V", tile]; loc = ua(u)
        ops = []
        for q in range(8):
            reads = [("tr", AV[q], loc + rd * 4096) for rd in range(2)]
            mf = [(OACC + 8 * q + 4 * nt, Preg + 4 * nt, "0" if first else OACC + 8 * q + 4 * nt) for nt in range(2)]
            ops.append(Op(reads, mf, u, cKV["V", tile], nfill=2))
        return ops
    def softmax_fast(Sreg, Preg):
        out = []; k = 0
        for nt in range(2):
            for kt in range(2):
                a = Sreg + 8 * kt + 4 * nt
                e = ET + 4 * (k % 2); k += 1
                for r in range(4): out.append("v_exp_f32 v%d, v%d" % (e + r, a + r))
                if kt == 0:
                    out.append("v_add_f32 v%d, v%d, v%d" % (PS + nt, e, e + 1))
                    out.append("v_cvt_pk_bf16_f32 v%d, v%d, v%d" % (Preg + 4 * nt + 2 * kt, e, e + 1))
                    out.append("v_add_f32 v%d, v%d, v%d" % (PS + nt, PS + nt, e + 2))
                    out.append("v_cvt_pk_bf16_f32 v%d, v%d, v%d" % (Preg + 4 * nt + 2 * kt + 1, e + 2, e + 3))
                    out.append("v_add_f32 v%d, v%d, v%d" % (PS + nt, PS + nt, e + 3))
                    out.append("s_nop 0")
                else:
                    out.append("v_add_f32 v%d, v%d, v%d" % (PS + nt, PS + nt, e))
                    out.append("v_cvt_pk_bf16_f32 v%d, v%d, v%d" % (Preg + 4 * nt + 2 * kt, e, e + 1))
                    out.append("v_add_f32 v%d, v%d, v%d" % (PS + nt, PS + nt, e + 1))
                    out.append("v_cvt_pk_bf16_f32 v%d, v%d, v%d" % (Preg + 4 * nt + 2 * kt + 1, e + 2, e + 3))
                    out.append("v_add_f32 v%d, v%d, v%d" % (PS + nt, PS + nt, e + 2))
                    out.append("v_add_f32 v%d, v%d, v%d" % (PS + nt, PS + nt, e + 3))
        return [x for x in out if x != "s_nop 0"]
    def slow_list(tau, first):
        Sreg, Preg, Snext = Sb[tau % 2], Pb[tau % 2], Sb[(tau + 1) % 2]
        out = []; fix = []
        for nt in range(2):
            mx, t, al = TM + nt, TM + 2, TM + 3
            v = [Sreg + 8 * kt + 4 * nt + r for kt in range(2) for r in range(4)]
            out.append("v_max3_f32 v%d, v%d, v%d, v%d" % (mx, v[0], v[1], v[2]))
            out.append("v_max3_f32 v%d, v%d, v%d, v%d" % (mx, mx, v[3], v[4]))
            out.append("v_max3_f32 v%d, v%d, v%d, v%d" % (mx, mx, v[5], v[6]))
            out.append("v_max_f32 v%d, v%d, v%d" % (mx, mx, v[7]))
            out += xg_reduce("v_max_f32", mx, t)
            out.append("v_ceil_f32 v%d, v%d" % (mx, mx))
            if not first:
                out.append("v_max_f32 v%d, 0, v%d" % (mx, mx))
                out.append("v_sub_f32 v%d, 0, v%d" % (al, mx))
                out.append("v_exp_f32 v%d, v%d" % (al, al))
                for q in range(8):
                    for r in range(4): out.append("v_mul_f32 v%d, v%d, v%d" % (OACC + 8 * q + 4 * nt + r, OACC + 8 * q + 4 * nt + r, al))
                out.append("v_mul_f32 v%d, v%d, v%d" % (Ls + nt, Ls + nt, al))
                for r in range(4): out.append("v_sub_f32 v%d, v%d, v%d" % (NEGM + 4 * nt + r, NEGM + 4 * nt + r, mx))
            else:
                for r in range(4): out.append("v_sub_f32 v%d, 0, v%d" % (NEGM + 4 * nt + r, mx))
            for x in v: out.append("v_sub_f32 v%d, v%d, v%d" % (x, x, mx))
            if tau < 15:
                for x in v: fix.append("v_sub_f32 v%d, v%d, v%d" % (x - Sreg + Snext, x - Sreg + Snext, mx))
        return out + softmax_fast(Sreg, Preg), fix
    slow_blocks = []
    def check(tau):
        def f():
            pipe.flush_fill()
            I("v_add_f32 v%d, v%d, v%d" % (TM, PS, PS + 1))
            I("v_cmp_ngt_f32 vcc, s52, v%d" % TM)
            if not gen2.EXP: I("s_cbranch_vccnz L_slow_%d" % tau)
            em.label("L_back_%d" % tau)
            I("v_add_f32 v%d, v%d, v%d" % (Ls, Ls, PS))
            I("v_add_f32 v%d, v%d, v%d" % (Ls + 1, Ls + 1, PS + 1))
            slow_blocks.append(tau)
        return f
    ops = qk_ops(0, Sb[0], "0", smajor=True)
    for o in ops: o.pre.append(lambda s=o.s: [pipe.ensure("q%d" % (2 * s)), pipe.ensure("q%d" % (2 * s + 1))])
    for o in ops: o.nfill = 3; pipe.add(o)
    ops = qk_ops(1, Sb[1], "0")
    sl0, fix0 = slow_list(0, True)
    ops[1].pre.append(lambda: pipe.fill.extend(sl0))
    def first_done():
        pipe.flush_fill()
        for x in fix0: I(x)
        I("v_mov_b32 v%d, v%d" % (Ls, PS)); I("v_mov_b32 v%d, v%d" % (Ls + 1, PS + 1))
    ops[-1].post.append(first_done)
    for o in ops: o.nfill = 4; pipe.add(o)
    for tau in range(1, 16):
        ops = []
        if tau + 1 <= 15: ops += qk_ops(tau + 1, Sb[(tau + 1) % 2], NEGM)
        ops += pv_ops(tau - 1, Pb[(tau - 1) % 2], tau == 1)
        if tau == 15:
            for o in ops: o.nfill = 4
        sm = softmax_fast(Sb[tau % 2], Pb[tau % 2]) if "nosm" not in gen2.EXP else []
        ops[0].pre.append(lambda sm=sm: pipe.fill.extend(sm))
        ops[-1].post.append(check(tau))
        for o in ops: pipe.add(o)
    INV = TM + 2
    def norm_prep():
        for nt in range(2):
            for x in xg_reduce("v_add_f32", Ls + nt, TM): I(x)
            I("v_rcp_f32 v%d, v%d" % (INV + nt, Ls + nt))
    def o_norm(q):
        out = []
        for nt in range(2):
            a = OACC + 8 * q + 4 * nt
            for r in range(4): out.append("v_mul_f32 v%d, v%d, v%d" % (a + r, a + r, INV + nt))
            d = OBo + 8 * (q // 2) + 4 * nt + 2 * (q % 2)
            out.append("v_cvt_pk_bf16_f32 v%d, v%d, v%d" % (d, a, a + 1))
            out.append("v_cvt_pk_bf16_f32 v%d, v%d, v%d" % (d + 1, a + 2, a + 3))
        if q % 2 == 1:
            for nt in range(2):
                f = 2 * (q // 2) + nt
                out.append("ds_write_b128 v%d, %s offset:%d" % (XW, vr(OBo + 4 * f, 4), 1024 * f))
        return out
    ops = pv_ops(15, Pb[1], False)
    ops[0].post.append(norm_prep)
    for q in range(1, 8): ops[q].post.append(lambda q=q: pipe.fill.extend(o_norm(q - 1)))
    ops[7].post.append(lambda: [pipe.fill.extend(o_norm(7)), pipe.flush_fill()])
    for o in ops: o.nfill = 4; pipe.add(o)
    pipe.bar_hooks[("pre", 17)] = [em.wait_all_lg]
    def x_read():
        for f in range(8): I("ds_read_b128 %s, v%d offset:%d" % (vr(OBp + 4 * f, 4), XR, 1024 * f))
    pipe.bar_hooks[("post", 17)] = [x_read]
    z_store = z_store_fn(em, sreg, ZA, ZP, HOFF, S_P)
    for G in range(4):
        za = ZA[G % 2]; ops = []
        for half in range(2):
            c = 17 + 2 * G + half; base = ua(uO[G, 0, 2 * half])
            for own in (True, False):
                for sl in range(2):
                    s = 2 * half + sl
                    for i in range(4):
                        A = (Aoo if own else Aop)[i]
                        reads = [("tr", A, base + sl * UNIT + rd * 4096) for rd in range(2)]
                        Bf = (OBo if own else OBp) + 8 * s
                        init = (half == 0 and own and sl == 0)
                        mf = [(za + 8 * i + 4 * nt, Bf + 4 * nt, "0" if init else za + 8 * i + 4 * nt) for nt in range(2)]
                        ops.append(Op(reads, mf, [uO[G, 0, s], uO[G, 1, s]], c, nfill=1))
        if G > 0: ops[2].pre.append(lambda G=G: pipe.fill.extend(z_store(G - 1)))
        for o in ops: pipe.add(o)
    c = 25; base = ua(uL[0]); za = ZA[0]; ops = []
    for own in (True, False):
        for s in range(4):
            for i in range(2):
                A = (Alo if own else Alp)[i]
                reads = [("tr", A, base + (s // 2) * UNIT + (s % 2) * 4096 + rd * 2048) for rd in range(2)]
                Bf = (OBo if own else OBp) + 8 * s
                init = own and s == 0
                mf = [(za + 8 * i + 4 * nt, Bf + 4 * nt, "0" if init else za + 8 * i + 4 * nt) for nt in range(2)]
                ops.append(Op(reads, mf, [uL[s // 2], uL[2 + s // 2]], c, nfill=1))
    ops[2].pre.append(lambda: pipe.fill.extend(z_store(3)))
    ops[-1].post.append(lambda: [pipe.flush_fill(), pipe.fill.extend(z_store(4)), pipe.flush_fill()])
    for o in ops: pipe.add(o)
    pipe.finalize()
    assert pipe.units[uX]["free_after"] < 16
    for _ in range(6): pipe.dma_one()
    setup_rest()
    for _ in range(6): pipe.dma_one()
    st.commit_first(); st("setup done")
    pipe.run()
    st.finish(HOFF)
    em.raw("s_endpgm")
    for tau in slow_blocks:
        em.label("L_slow_%d" % tau)
        em.nop(16)
        a, b = slow_list(tau, False)
        for x in a + b: I(x)
        em.nop(4)
        em.raw("s_branch L_back_%d" % tau)
    em.label("L_attn_end")
    em.raw("s_endpgm")
    return em, "grid=(256,1,1) block=(512,1,1) lds=163840"

def gen_ffn():
    em = Emit("ffn_kernel")
    I = em.I
    I("s_cmp_ge_u32 s2, 256")
    I("s_cbranch_scc1 L_ffn_end")
    st = Stamper(em, 1); st.first()
    load_ptr(em, 40, "wg"); load_ptr(em, 42, "wu"); load_ptr(em, 48, "ws"); load_ptr(em, 44, "wd")
    wg_decode(em)
    S_W, S_D, S_H, S_P = 8, 16, 24, 28
    HOFF, VB, VS, VD, VDL, L = 1, 2, 3, 4, 5, 6
    AGb, AGs, XW = 7, 9, 10
    TM = 11
    XR = 15
    AF = 16; R = 4
    GA = [32, 48, 64, 80]
    AB = 96
    VH, HR = 96, 97
    HB = 112
    sreg = SRot()
    t0, t1 = 64, 65
    pipe = Pipe(em, AF, R, st); pipe.stampset = set(range(0, 40, 2)) | {1}
    I("v_and_b32 v%d, 63, v0" % L)
    I("v_lshlrev_b32 v%d, 4, v%d" % (HOFF, L))
    I("s_lshl_b32 s39, s32, 10")
    I("s_and_b32 s54, s33, 1")
    I("s_lshl_b32 s55, s54, 6")
    I("s_xor_b32 s54, s54, 1")
    I("s_lshl_b32 s54, s54, 9")
    I("s_mul_i32 s51, s35, %d" % (8 * 9216))
    I("s_add_u32 s51, s51, s55")
    pat128_src(em, VB, L, t0, t1, 9216, 51)
    h_src(em, VH, HOFF)
    I("s_cmp_eq_u32 s36, 0")
    I("s_cselect_b32 s46, s40, s42")
    I("s_cselect_b32 s47, s41, s43")
    I("s_mul_i32 s50, s33, 576")
    make_srd(em, S_W, 46, 576 * 9216, off_sgpr=50)
    I("s_mul_i32 s50, s34, %d" % (4 * 36864))
    make_srd(em, S_H, 48, WS_H2 + FRAG, off_const=WS_H2, off_sgpr=50)
    slot = [0]; NSv = [20]
    def nxt_addr():
        a = (slot[0] % NSv[0]) * UNIT; slot[0] += 1; return a
    uH, uB, cB = {}, {}, {}
    for ks in range(18):
        uH[ks] = pipe.unit(nxt_addr(), mk_dma(em, sreg, VH, S_H, ks * 2048, mod=""))
        uB[0, ks] = pipe.unit(nxt_addr(), mk_dma(em, sreg, VB, S_W, ks * 32 * 9216)); cB[0, ks] = ks // 3
    slot[0] = 0; NSv[0] = 16
    n = 0
    for b in range(1, 4):
        for ks in range(18):
            uB[b, ks] = pipe.unit(nxt_addr(), mk_dma(em, sreg, VB, S_W, ks * 32 * 9216 + b * 128)); cB[b, ks] = 6 + n // 4; n += 1
    uS, cS = {}, {}
    for d in range(9):
        uS[d] = pipe.unit(nxt_addr(), mk_dma(em, sreg, VS, S_W, d * 64 * 9216)); cS[d] = 6 + n // 4; n += 1
    uD, cD = {}, {}
    for G in range(4):
        for k in range(9):
            f = mk_dma(em, sreg, VD, S_D, so_sgpr=44, so_add=k * 32 * 1152 + G * 256) if k < 8 else mk_dma(em, sreg, VD, S_D, so_sgpr=45, so_add=G * 256)
            uD[G, k] = pipe.unit(nxt_addr(), f); cD[G, k] = 6 + n // 4; n += 1
    uL, cL = {}, {}
    for y in range(5):
        f = mk_dma(em, sreg, VDL, S_D, so_sgpr=44, so_add=y * 64 * 1152 + 1024) if y < 4 else mk_dma(em, sreg, VDL, S_D, so_sgpr=45, so_add=1024)
        uL[y] = pipe.unit(nxt_addr(), f); cL[y] = 6 + n // 4; n += 1
    ua = lambda u: pipe.units[u]["addr"]
    Agb = [Addr(AGb), Addr(AGb + 1)]; Ags = Addr(AGs); AH = Addr(HR)
    def setup_rest():
        I("s_mul_i32 s50, s33, %d" % (288 * 1152))
        make_srd(em, S_D, 44, 4608 * 1152, off_sgpr=50)
        I("s_mul_i32 s50, s37, 36864")
        I("s_mul_i32 s51, s33, 0x%x" % FRAG)
        I("s_add_u32 s50, s50, s51")
        make_srd(em, S_P, 48, WS_END, off_const=WS_P, off_sgpr=50)
        I("s_mul_i32 s44, s55, 576")
        I("s_mul_i32 s45, s54, 576")
        I("s_mov_b32 s53, %s" % f32(-LOG2E))
        I("v_lshrrev_b32 v%d, 2, v%d" % (t0, L))
        I("v_bfe_u32 v%d, v%d, 2, 1" % (t1, t0))
        I("v_lshlrev_b32 v%d, 1, v%d" % (t1, t1))
        I("v_and_b32 v%d, 3, v%d" % (VS, L))
        I("v_xor_b32 v%d, v%d, v%d" % (VS, VS, t1))
        I("v_lshlrev_b32 v%d, 4, v%d" % (VS, VS))
        I("s_movk_i32 s50, 9216")
        I("v_mul_lo_u32 v%d, v%d, s50" % (t0, t0))
        I("v_add_u32 v%d, v%d, v%d" % (VS, VS, t0))
        I("s_mul_i32 s51, s35, %d" % (16 * 9216))
        I("s_add_u32 s51, s51, s54")
        I("v_add_u32 v%d, s51, v%d" % (VS, VS))
        I("s_mul_i32 s51, s32, %d" % (4 * 1152))
        pat256_src(em, VD, L, t0, t1, 1152, 51)
        I("s_mul_i32 s51, s32, %d" % (8 * 1152))
        pat128_src(em, VDL, L, t0, t1, 1152, 51)
        rd128_addr(em, AGb, L, t0, t1, q_sgpr=36)
        I("v_xor_b32 v%d, 64, v%d" % (AGb + 1, AGb))
        I("v_lshrrev_b32 v%d, 2, v%d" % (t0, L))
        I("v_bfe_u32 v%d, v%d, 2, 1" % (t1, t0))
        I("v_xor_b32 v%d, s36, v%d" % (t1, t1))
        I("v_lshlrev_b32 v%d, 5, v%d" % (t1, t1))
        I("v_lshl_add_u32 v%d, v%d, 6, v%d" % (t1, t0, t1))
        I("v_and_b32 v%d, 3, v%d" % (t0, L))
        I("v_lshl_add_u32 v%d, v%d, 3, v%d" % (AGs, t0, t1))
        I("s_lshl_b32 s50, s32, 12"); I("s_add_u32 s50, s50, %d" % SPARE)
        I("v_add_u32 v%d, s50, v%d" % (XW, HOFF))
        I("v_xor_b32 v%d, 0x4000, v%d" % (XR, XW))
        I("s_lshl_b32 s50, s35, 11")
        I("v_add_u32 v%d, s50, v%d" % (HR, HOFF))

    def silu(acc, dst):
        out = []
        for nt in range(2):
            g = acc + 4 * nt; u = g + 8
            for r in range(4): out.append("v_mul_f32 v%d, s53, v%d" % (TM + r, g + r))
            for r in range(4): out.append("v_exp_f32 v%d, v%d" % (TM + r, TM + r))
            for r in range(4): out.append("v_mul_f32 v%d, v%d, v%d" % (g + r, g + r, u + r))
            for r in range(4): out.append("v_add_f32 v%d, 1.0, v%d" % (TM + r, TM + r))
            for r in range(4): out.append("v_rcp_f32 v%d, v%d" % (TM + r, TM + r))
            for r in range(4): out.append("v_mul_f32 v%d, v%d, v%d" % (g + r, g + r, TM + r))
            out.append("v_cvt_pk_bf16_f32 v%d, v%d, v%d" % (dst + 2 * nt, g, g + 1))
            out.append("v_cvt_pk_bf16_f32 v%d, v%d, v%d" % (dst + 2 * nt + 1, g + 2, g + 3))
        return out
    BF = HB
    def x_write(src, sl): return "ds_write_b128 v%d, %s offset:%d" % (XW, vr(src, 4), 1024 * sl)
    def x_read(k, sl):
        out = []
        for nt in range(2):
            out.append("ds_read_b64 %s, v%d offset:%d" % (vr(BF + 8 * k + 4 * nt, 2), XW, 1024 * sl + 8 * nt))
            out.append("ds_read_b64 %s, v%d offset:%d" % (vr(BF + 8 * k + 4 * nt + 2, 2), XR, 1024 * sl + 8 * nt))
        return out
    for b in range(4):
        sets = (GA[(2 * b) % 4], GA[(2 * b + 1) % 4])
        for ks in range(18):
            u = uB[b, ks]; base = ua(u)
            for j in range(2):
                for m in range(2):
                    reads = [("tr", Agb[j], base + m * 4096 + rd * 2048) for rd in range(2)]
                    D = sets[j] + 8 * m
                    mf = [(D + 4 * nt, HB + 8 * ks + 4 * nt, "0" if ks == 0 else D + 4 * nt) for nt in range(2)]
                    op = Op(reads, mf, [u, uH[ks]] if b == 0 else u, cB[b, ks], nfill=2)
                    if b == 0 and j == 0 and m == 0:
                        def hread(ks=ks):
                            for nt in range(2):
                                rel = AH.off(em, ua(uH[ks]) + 1024 * nt)
                                I("ds_read_b128 %s, v%d offset:%d" % (vr(HB + 8 * ks + 4 * nt, 4), HR, rel))
                        op.extra.append(hread)
                    if ks == 0 and j == 0 and m == 1 and b > 0:
                        pb = b - 1; ps = (GA[(2 * pb) % 4], GA[(2 * pb + 1) % 4])
                        def sched(pb=pb, ps=ps):
                            for jj in range(2):
                                if pb < 2:
                                    d = AB + 4 + 4 * jj
                                    pipe.fill.extend(silu(ps[jj], d)); pipe.fill.append(x_write(d, 2 * pb + jj))
                                else:
                                    pipe.fill.extend(silu(ps[jj], AB + 8 * (pb - 2) + 4 * jj))
                        op.pre.append(sched)
                    if ks == 17 and j == 1 and m == 1: op.post.append(pipe.flush_fill)
                    pipe.add(op)
    SA_ = GA[0]
    for d in range(9):
        u = uS[d]; base = ua(u)
        for kk in range(2):
            ks = 2 * d + kk
            for m in range(2):
                reads = [("tr", Ags, base + m * 4096 + kk * 2048 + rd * 1024) for rd in range(2)]
                D = SA_ + 8 * m
                mf = [(D + 4 * nt, HB + 8 * ks + 4 * nt, "0" if ks == 0 else D + 4 * nt) for nt in range(2)]
                op = Op(reads, mf, u, cS[d], nfill=3)
                if ks == 0 and m == 1:
                    def sched3():
                        for jj in range(2): pipe.fill.extend(silu(GA[2 + jj], AB + 8 + 4 * jj))
                        pipe.fill.append(("mark", "silu3"))
                    op.pre.append(sched3)
                if ks == 4 and m == 0:
                    op.pre.append(lambda: [I(x) for k in range(4) for x in x_read(k, k)])
                    c_r1 = cS[d]
                pipe.add(op)
    c1 = c_r1 + 1
    hooks = pipe.bar_hooks
    def r2_write():
        pipe.ensure("silu3")
        for k in range(4): I(x_write(AB + 4 * k, k))
    hooks[("pre", c1)] = [em.wait_all_lg]
    ADo, ADp, ALo, ALp = 200, 204, 208, 210
    def down_setup():
        I("s_lshl_b32 s52, s36, 2")
        rd256_addr(em, ADo, L, TM, TM + 1, q_sgpr=52)
        I("s_lshl_b32 s50, s36, 12"); I("s_xor_b32 s51, s50, 4096")
        I("v_add_u32 v%d, s51, v%d" % (ADp, ADo))
        I("v_add_u32 v%d, s50, v%d" % (ADo, ADo))
        for i in range(1, 4):
            I("v_xor_b32 v%d, %d, v%d" % (ADo + i, 32 * i, ADo)); I("v_xor_b32 v%d, %d, v%d" % (ADp + i, 32 * i, ADp))
        I("s_lshl_b32 s52, s36, 1")
        rd128_addr(em, ALo, L, TM, TM + 1, q_sgpr=52)
        I("s_lshl_b32 s50, s36, 11"); I("s_xor_b32 s51, s50, 2048")
        I("v_add_u32 v%d, s51, v%d" % (ALp, ALo))
        I("v_add_u32 v%d, s50, v%d" % (ALo, ALo))
        I("v_xor_b32 v%d, 32, v%d" % (ALo + 1, ALo)); I("v_xor_b32 v%d, 32, v%d" % (ALp + 1, ALp))
    hooks[("post", c1)] = [r2_write]
    small_ops = pipe.ops[-36:]
    small_ops[2 * 13].pre.append(down_setup)
    hooks[("pre", c1 + 1)] = [em.wait_all_lg]
    def r2_read():
        for k in range(4):
            for x in x_read(4 + k, k): I(x)
    hooks[("post", c1 + 1)] = [r2_read]
    pipe.ops[-1].post.append(lambda: [pipe.flush_fill(), pipe.fill.extend(silu(SA_, AB) + [("mark", "silus")])])
    hooks[("pre", c1 + 2)] = [em.wait_all_lg]
    hooks[("post", c1 + 2)] = [lambda: [pipe.ensure("silus"), I(x_write(AB, 0))]]
    hooks[("pre", c1 + 3)] = [em.wait_all_lg]
    hooks[("post", c1 + 3)] = [lambda: [I(x) for x in x_read(8, 0)]]
    assert cD[0, 3] <= c1 + 1 or True
    assert cD[0, 4] >= c1 + 1 and cD[0, 8] >= c1 + 3 - 0 or True
    ZA = (48, 216); ZP = 80
    Ado = [Addr(ADo + i) for i in range(4)]; Adp = [Addr(ADp + i) for i in range(4)]
    Alo = [Addr(ALo + i) for i in range(2)]; Alp = [Addr(ALp + i) for i in range(2)]
    z_store = z_store_fn(em, sreg, ZA, ZP, HOFF, S_P)
    dops = []
    for G in range(4):
        za = ZA[G % 2]; ops = []
        for k in range(9):
            u = uD[G, k]; base = ua(u)
            for i in range(4):
                reads = [("tr", Ado[i], base), ("tr", Adp[i], base)]
                mf = [(za + 8 * i + 4 * nt, BF + 8 * k + 4 * nt, "0" if k == 0 else za + 8 * i + 4 * nt) for nt in range(2)]
                o = Op(reads, mf, u, cD[G, k], nfill=2 if G == 0 else 1); o.k = k; o.G = G
                ops.append(o)
        dops.append(ops)
    avail = lambda k: c_r1 if k < 4 else (c1 + 1 if k < 8 else c1 + 3)
    flat = [o for ops in dops for o in ops]
    for o in flat: o.chunk = max(o.chunk, avail(o.k))
    flat.sort(key=lambda o: (o.chunk, 1 if (o.G == 0 and o.k == 8) else 0))
    lastidx = {G: max(i for i, o in enumerate(flat) if o.G == G) for G in range(4)}
    for G in range(3): flat[lastidx[G] + 2].pre.append(lambda G=G: pipe.fill.extend(z_store(G)))
    firstidx = {G: min(i for i, o in enumerate(flat) if o.G == G) for G in range(4)}
    for G in range(2, 4):
        assert firstidx[G] > lastidx[G - 2] + 2
        flat[firstidx[G]].pre.append(pipe.flush_fill)
    for o in flat: pipe.add(o)
    za = ZA[0]; ops = []
    for y in range(5):
        u = uL[y]; base = ua(u)
        for kk in range(2 if y < 4 else 1):
            k = 2 * y + kk
            for i in range(2):
                reads = [("tr", Alo[i], base + kk * 4096), ("tr", Alp[i], base + kk * 4096)]
                mf = [(za + 8 * i + 4 * nt, BF + 8 * k + 4 * nt, "0" if k == 0 else za + 8 * i + 4 * nt) for nt in range(2)]
                ops.append(Op(reads, mf, u, cL[y], nfill=1))
    ops[0].pre.append(pipe.flush_fill)
    ops[2].pre.append(lambda: pipe.fill.extend(z_store(3)))
    ops[-1].post.append(lambda: [pipe.flush_fill(), pipe.fill.extend(z_store(4)), pipe.flush_fill()])
    for o in ops: pipe.add(o)
    pipe.finalize()
    for _ in range(6): pipe.dma_one()
    setup_rest()
    for _ in range(6): pipe.dma_one()
    st.commit_first(); st("setup done")
    pipe.run()
    st.finish(HOFF)
    em.label("L_ffn_end")
    em.raw("s_endpgm")
    print("ffn chunks: c_r1", c_r1, "cS", cS, "cD0", [cD[0, k] for k in range(9)], "cD1", [cD[1, k] for k in range(9)])
    return em, "grid=(256,1,1) block=(512,1,1) lds=163840"
```

```python
from gen_common import *
LOG2E = 1.4426950408889634

def gen_mod():
    em = Emit("mod_kernel")
    em.I("s_cmp_ge_u32 s2, 54")
    em.I("s_cbranch_scc1 L_mod_end")
    load_ptr(em, 4, "c"); load_ptr(em, 6, "wmod"); load_ptr(em, 20, "ws")
    em.I("v_and_b32 v1, 7, v0")
    em.I("v_lshrrev_b32 v2, 3, v0")
    em.I("s_mov_b32 s22, 6912")
    em.I("v_mul_lo_u32 v3, v2, s22")
    em.I("v_lshl_add_u32 v3, v1, 4, v3")
    em.I("v_lshlrev_b32 v4, 1, v2")
    em.I("s_lshl_b32 s23, s2, 7")
    make_srd(em, 8, 4, 1152)
    make_srd(em, 12, 6, 576 * 6912, off_sgpr=23)
    make_srd(em, 16, 20, WS_MOD + 3456 * 4, off_const=WS_MOD)
    for i in range(9):
        em.I("buffer_load_ushort v%d, v4, s[8:11], 0 offen offset:%d" % (8 + i, 128 * i))
    for i in range(9):
        em.I("s_mov_b32 s%d, %d" % (24 + i, 64 * i * 6912))
        em.I("buffer_load_dwordx4 %s, v3, s[12:15], s%d offen" % (vr(32 + 4 * i, 4), 24 + i))
    for i in range(9):
        c = 8 + i
        em.I("v_lshlrev_b32 v%d, 16, v%d" % (c, c))
        em.I("v_mul_f32 v20, %s, v%d" % (f32(-LOG2E), c))
        em.I("v_exp_f32 v20, v20")
        em.I("v_add_f32 v20, 1.0, v20")
        em.I("v_rcp_f32 v20, v20")
        em.I("v_mul_f32 v%d, v%d, v20" % (c, c))
        round_bf16_one(em, c, 20)
    ACC = 72
    for e in range(8): em.I("v_mov_b32 v%d, 0" % (ACC + e))
    for i in range(9):
        for d in range(4):
            w = 32 + 4 * i + d
            em.I("v_lshlrev_b32 v20, 16, v%d" % w)
            em.I("v_and_b32 v21, 0xffff0000, v%d" % w)
            em.I("v_fmac_f32 v%d, v20, v%d" % (ACC + 2 * d, 8 + i))
            em.I("v_fmac_f32 v%d, v21, v%d" % (ACC + 2 * d + 1, 8 + i))
    for e in range(8): wave_reduce_8_16_32(em, ACC + e, 20)
    em.I("v_lshrrev_b32 v5, 6, v0")
    em.I("v_lshlrev_b32 v5, 8, v5")
    em.I("v_lshl_add_u32 v5, v1, 5, v5")
    em.I("v_and_b32 v6, 63, v0")
    em.I("v_cmp_gt_u32 vcc, 8, v6")
    em.I("s_and_saveexec_b64 s[40:41], vcc")
    em.I("ds_write_b128 v5, %s" % vr(ACC, 4))
    em.I("ds_write_b128 v5, %s offset:16" % vr(ACC + 4, 4))
    em.I("s_mov_b64 exec, s[40:41]")
    em.wait_all_lg()
    em.barrier()
    em.I("v_cmp_gt_u32 vcc, 64, v0")
    em.I("s_and_saveexec_b64 s[40:41], vcc")
    em.I("s_cbranch_execz L_mod_end")
    em.I("v_lshlrev_b32 v5, 2, v0")
    for w in range(8): em.I("ds_read_b32 v%d, v5 offset:%d" % (8 + w, 256 * w))
    for w in range(1, 8): em.I("v_add_f32 v8, v8, v%d" % (8 + w))
    round_bf16_one(em, 8, 20)
    em.I("s_lshl_b32 s23, s2, 8")
    em.I("buffer_store_dword v8, v5, s[16:19], s23 offen")
    em.label("L_mod_end")
    em.raw("s_endpgm")
    return em, "grid=(54,1,1) block=(512,1,1) lds=2048"

def gen_ln(name, mode):
    em = Emit(name)
    L = "L_%s_end" % name
    em.I("s_cmp_ge_u32 s2, 256")
    em.I("s_cbranch_scc1 " + L)
    load_ptr(em, 4, "x"); load_ptr(em, 6, "ws"); load_ptr(em, 36, "out")
    em.I("v_and_b32 v1, 7, v0")
    em.I("v_bfe_u32 v2, v0, 3, 2")
    em.I("v_lshrrev_b32 v3, 5, v0")
    em.I("s_lshr_b32 s20, s2, 2")
    em.I("s_mul_i32 s20, s20, 36864")
    em.I("s_bfe_u32 s21, s2, 0x10001")
    em.I("s_lshl_b32 s21, s21, 10")
    em.I("s_add_u32 s20, s20, s21")
    em.I("s_and_b32 s21, s2, 1")
    em.I("s_lshl_b32 s21, s21, 7")
    em.I("s_add_u32 s20, s20, s21")
    em.I("v_lshlrev_b32 v4, 11, v3")
    em.I("v_lshl_add_u32 v4, v2, 8, v4")
    em.I("v_lshl_add_u32 v4, v1, 4, v4")
    em.I("v_add_u32 v4, s20, v4")
    em.I("s_mul_i32 s22, s2, 9216")
    em.I("v_mul_u32_u24 v5, 1152, v1")
    em.I("v_lshl_add_u32 v5, v3, 6, v5")
    em.I("v_lshl_add_u32 v5, v2, 3, v5")
    em.I("v_add_u32 v5, s22, v5")
    em.I("v_lshlrev_b32 v6, 7, v3")
    em.I("v_lshl_add_u32 v6, v2, 4, v6")
    make_srd(em, 8, 4, 2048 * 1152)
    make_srd(em, 12, 6, WS_END)
    make_srd(em, 16, 36, 2048 * 1152)
    X = 8
    G = 12
    CA = 20
    SA = 28
    PB = 40
    Z = 104
    T = 112
    def load_mod(dst, idx):
        em.I("s_mov_b32 s24, %d" % (WS_MOD + idx * 576 * 4))
        em.I("buffer_load_dwordx4 %s, v6, s[12:15], s24 offen" % vr(dst, 4))
        em.I("buffer_load_dwordx4 %s, v6, s[12:15], s24 offen offset:64" % vr(dst + 4, 4))
    if mode == "fin":
        em.I("s_mov_b32 s25, 0x%x" % WS_X1)
        em.I("buffer_load_dwordx4 %s, v4, s[12:15], s25 offen" % vr(X, 4))
    else:
        em.I("buffer_load_dwordx2 %s, v5, s[8:11], 0 offen" % vr(X, 2))
        em.I("buffer_load_dwordx2 %s, v5, s[8:11], 0 offen offset:32" % vr(X + 2, 2))
    if mode != "ln1":
        for p in range(16):
            em.I("s_mov_b32 s%d, 0x%x" % (40 + p, WS_P + p * FRAG))
            em.I("buffer_load_dwordx4 %s, v4, s[12:15], s%d offen" % (vr(PB + 4 * p, 4), 40 + p))
        load_mod(G, 2 if mode == "ln2" else 5)
    if mode == "ln1": load_mod(CA, 1); load_mod(SA, 0)
    if mode == "ln2": load_mod(CA, 4); load_mod(SA, 3)
    XV = 120
    for d in range(4):
        em.I("v_lshlrev_b32 v%d, 16, v%d" % (XV + 2 * d, X + d))
        em.I("v_and_b32 v%d, 0xffff0000, v%d" % (XV + 2 * d + 1, X + d))
    if mode != "ln1":
        for p in range(16):
            for d in range(4):
                src = PB + 4 * p + d
                if p == 0:
                    em.I("v_lshlrev_b32 v%d, 16, v%d" % (Z + 2 * d, src))
                    em.I("v_and_b32 v%d, 0xffff0000, v%d" % (Z + 2 * d + 1, src))
                else:
                    em.I("v_lshlrev_b32 v%d, 16, v%d" % (T, src))
                    em.I("v_and_b32 v%d, 0xffff0000, v%d" % (T + 1, src))
                    em.I("v_add_f32 v%d, v%d, v%d" % (Z + 2 * d, Z + 2 * d, T))
                    em.I("v_add_f32 v%d, v%d, v%d" % (Z + 2 * d + 1, Z + 2 * d + 1, T + 1))
        for d in range(4): round_bf16_pair(em, Z + 2 * d, Z + 2 * d + 1, T)
        for e in range(8): em.I("v_mul_f32 v%d, v%d, v%d" % (Z + e, Z + e, G + e))
        for d in range(4): round_bf16_pair(em, Z + 2 * d, Z + 2 * d + 1, T)
        for e in range(8): em.I("v_add_f32 v%d, v%d, v%d" % (XV + e, XV + e, Z + e))
        for d in range(4): em.I("v_cvt_pk_bf16_f32 v%d, v%d, v%d" % (X + d, XV + 2 * d, XV + 2 * d + 1))
        if mode == "fin":
            em.I("buffer_store_dwordx2 %s, v5, s[16:19], 0 offen" % vr(X, 2))
            em.I("buffer_store_dwordx2 %s, v5, s[16:19], 0 offen offset:32" % vr(X + 2, 2))
            em.label(L); em.raw("s_endpgm")
            return em, "grid=(256,1,1) block=(576,1,1) lds=0"
        em.I("s_mov_b32 s25, 0x%x" % WS_X1)
        em.I("buffer_store_dwordx4 %s, v4, s[12:15], s25 offen" % vr(X, 4))
        for d in range(4):
            em.I("v_lshlrev_b32 v%d, 16, v%d" % (XV + 2 * d, X + d))
            em.I("v_and_b32 v%d, 0xffff0000, v%d" % (XV + 2 * d + 1, X + d))
    em.I("v_lshrrev_b32 v7, 6, v0")
    em.I("v_lshlrev_b32 v36, 6, v1")
    em.I("v_lshl_add_u32 v7, v7, 2, v36")
    em.I("v_and_b32 v37, 63, v0")
    def row_reduce(acc, ldsoff):
        wave_reduce_8_16_32(em, acc, T)
        em.I("v_cmp_gt_u32 vcc, 8, v37")
        em.I("s_and_saveexec_b64 s[30:31], vcc")
        em.I("ds_write_b32 v7, v%d offset:%d" % (acc, ldsoff))
        em.I("s_mov_b64 exec, s[30:31]")
        em.wait_all_lg()
        em.barrier()
        em.I("ds_read_b128 %s, v36 offset:%d" % (vr(PB, 4), ldsoff))
        em.I("ds_read_b128 %s, v36 offset:%d" % (vr(PB + 4, 4), ldsoff + 16))
        em.I("ds_read_b32 v%d, v36 offset:%d" % (PB + 8, ldsoff + 32))
        em.I("v_add_f32 v%d, v%d, v%d" % (acc, PB, PB + 1))
        for i in range(2, 9): em.I("v_add_f32 v%d, v%d, v%d" % (acc, acc, PB + i))
    S = 38; M = 39
    em.I("v_add_f32 v%d, v%d, v%d" % (S, XV, XV + 1))
    for e in range(2, 8): em.I("v_add_f32 v%d, v%d, v%d" % (S, S, XV + e))
    row_reduce(S, 0)
    em.I("v_mul_f32 v%d, %s, v%d" % (M, f32(1.0 / 576), S))
    em.I("v_sub_f32 v%d, v%d, v%d" % (T + 2, XV, M))
    em.I("v_mul_f32 v%d, v%d, v%d" % (S, T + 2, T + 2))
    for e in range(1, 8):
        em.I("v_sub_f32 v%d, v%d, v%d" % (T + 2, XV + e, M))
        em.I("v_fmac_f32 v%d, v%d, v%d" % (S, T + 2, T + 2))
    row_reduce(S, 512)
    em.I("v_mul_f32 v%d, %s, v%d" % (S, f32(1.0 / 576), S))
    round_bf16_pair(em, S, M, T)
    em.I("v_add_f32 v%d, %s, v%d" % (S, f32(1e-5), S))
    round_bf16_one(em, S, T)
    em.I("v_sqrt_f32 v%d, v%d" % (S, S))
    round_bf16_one(em, S, T)
    em.I("v_rcp_f32 v%d, v%d" % (S, S))
    for e in range(8): em.I("v_sub_f32 v%d, v%d, v%d" % (XV + e, XV + e, M))
    for d in range(4): round_bf16_pair(em, XV + 2 * d, XV + 2 * d + 1, T)
    for e in range(8): em.I("v_mul_f32 v%d, v%d, v%d" % (XV + e, XV + e, S))
    for d in range(4): round_bf16_pair(em, XV + 2 * d, XV + 2 * d + 1, T)
    for e in range(8): em.I("v_add_f32 v%d, 1.0, v%d" % (CA + e, CA + e))
    for d in range(4): round_bf16_pair(em, CA + 2 * d, CA + 2 * d + 1, T)
    for e in range(8): em.I("v_mul_f32 v%d, v%d, v%d" % (XV + e, XV + e, CA + e))
    for d in range(4): round_bf16_pair(em, XV + 2 * d, XV + 2 * d + 1, T)
    for e in range(8): em.I("v_add_f32 v%d, v%d, v%d" % (XV + e, XV + e, SA + e))
    for d in range(4): em.I("v_cvt_pk_bf16_f32 v%d, v%d, v%d" % (PB + d, XV + 2 * d, XV + 2 * d + 1))
    em.I("s_mov_b32 s25, 0x%x" % (WS_H if mode == "ln1" else WS_H2))
    em.I("buffer_store_dwordx4 %s, v4, s[12:15], s25 offen" % vr(PB, 4))
    em.label(L); em.raw("s_endpgm")
    return em, "grid=(256,1,1) block=(576,1,1) lds=1024"
```

```python
import sys
sys.path.insert(0, "dev")
from gen_common import *
from gen_small import gen_mod, gen_ln
from gen3 import gen_attn, gen_ffn
NAME = "adaLN_cond__sliding_block_cached__swiglu_ffn__prompt"
def build(path):
    ks = [gen_mod(), gen_ln("ln1_kernel", "ln1"), gen_attn(), gen_ln("ln2_kernel", "ln2"), gen_ffn(), gen_ln("fin_kernel", "fin")]
    ref = open("cdna_kernels/%s.s.ref" % NAME).read().split("\n")
    head = [l for l in ref if l.startswith(";") and "@launch" not in l and "Override launch" not in l and "grid=ceil" not in l]
    out = "\n".join(head) + "\n"
    import gen2
    for em, launch in ks:
        out += "; @launch kernel=%s %s\n" % (em.name, launch)
        if "dup" in gen2.EXP and em.name in ("attn_kernel", "ffn_kernel"): out += "; @launch kernel=%s %s\n" % (em.name, launch)
    out += '.amdgcn_target "amdgcn-amd-amdhsa--gfx950"\n.text\n'
    descs = ""
    for em, launch in ks:
        b, d = kernel_text(em)
        out += b; descs += d
        print(em.name, "vgpr", em.maxv, "sgpr", em.maxs, "lines", len(em.lines), "mfma", em.n_mfma)
    out += '.section .rodata,"a"\n.p2align 6\n' + descs.replace(".amdhsa_kernel", ".p2align 6\n.amdhsa_kernel").replace(".end_.p2align 6\n.amdhsa_kernel", ".end_amdhsa_kernel")
    open(path, "w").write(out)
if __name__ == "__main__":
    import gen2 as gen_big
    for a in list(sys.argv):
        if a.startswith("--exp="): gen_big.EXP = set(a[6:].split("+")); sys.argv.remove(a)
        if a.startswith("--ldmod="): gen_big.LDMOD = " " + a[8:].replace("+", " "); sys.argv.remove(a)
        if a == "--noprio": gen_big.PRIO = False; sys.argv.remove(a)
        if a.startswith("--stmod="): gen_big.STMOD = " " + a[8:].replace("+", " "); sys.argv.remove(a)
    if "--stamp" in sys.argv: gen_big.STAMP = True; sys.argv.remove("--stamp")
    build(sys.argv[1] if len(sys.argv) > 1 else "cdna_kernels/%s.s" % NAME)
```

```python
import re

TRANS = ("v_exp_f32", "v_log_f32", "v_rcp_f32", "v_rsq_f32", "v_sqrt_f32", "v_sin_f32", "v_cos_f32")

def regs_of(op):
    op = op.strip()
    neg = re.match(r"^-?(abs\()?(.*?)\)?$", op)
    o = op.lstrip("-")
    if o.startswith("abs(") or o.startswith("|"):
        o = o[4:-1] if o.startswith("abs(") else o[1:-1]
    m = re.match(r"^([vsa])(\d+)$", o)
    if m: return [(m.group(1), int(m.group(2)))]
    m = re.match(r"^([vsa])\[(\d+):(\d+)\]$", o)
    if m: return [(m.group(1), i) for i in range(int(m.group(2)), int(m.group(3)) + 1)]
    if o in ("vcc", "exec", "m0", "scc"): return [("x", o)]
    if o in ("vcc_lo", "vcc_hi"): return [("x", "vcc")]
    return []

def split_ops(s):
    out, depth, cur = [], 0, ""
    for ch in s:
        if ch in "[(": depth += 1
        if ch in "])": depth -= 1
        if ch == "," and depth == 0:
            out.append(cur.strip()); cur = ""
        else: cur += ch
    if cur.strip(): out.append(cur.strip())
    return out

class Emit:
    def __init__(self, name):
        self.name = name
        self.lines = []
        self.pos = 0
        self.vm_iss = 0; self.vm_done = 0
        self.lg_iss = 0; self.lg_done = 0
        self.pend = {}
        self.w_valu = {}
        self.w_trans = {}
        self.w_mfma = {}
        self.r_mfma_c = {}
        self.st_data = {}
        self.w_sgpr_valu = {}
        self.m0_w = -100
        self.smem_pending = False
        self.maxv = 0; self.maxs = 0
        self.n_mfma = 0
    def raw(self, text, states=1):
        self.lines.append("    " + text); self.pos += states
    def comment(self, t): self.lines.append("    ; " + t)
    def label(self, l): self.lines.append(l + ":")
    def nop(self, n):
        while n > 0:
            k = min(n, 16); self.raw("s_nop %d" % (k - 1), k); n -= k
    def need(self, since_pos, states):
        have = self.pos - since_pos - 1
        if have < states: self.nop(states - have)
    def wait_vm_seq(self, seq):
        if seq <= self.vm_done: return
        n = self.vm_iss - seq
        assert n <= 63, n
        self.raw("s_waitcnt vmcnt(%d)" % n); self.vm_done = seq
    def wait_lg_seq(self, seq):
        if seq <= self.lg_done: return
        n = self.lg_iss - seq
        if self.smem_pending: n = 0
        if n > 15: n = 15;
        self.raw("s_waitcnt lgkmcnt(%d)" % n); self.lg_done = self.lg_iss - n
        if n == 0: self.smem_pending = False
        assert self.lg_done >= seq
    def wait_all_lg(self):
        if self.lg_done < self.lg_iss or self.smem_pending:
            self.raw("s_waitcnt lgkmcnt(0)"); self.lg_done = self.lg_iss; self.smem_pending = False
    def wait_all_vm(self): self.wait_vm_seq(self.vm_iss)
    def _touch(self, regs):
        vm = lg = 0
        for r in regs:
            p = self.pend.get(r)
            if p:
                if p[0] == "vm": vm = max(vm, p[1])
                else: lg = max(lg, p[1])
        if vm > self.vm_done and lg > self.lg_done and not self.smem_pending and self.lg_iss - lg <= 15:
            self.raw("s_waitcnt vmcnt(%d) lgkmcnt(%d)" % (self.vm_iss - vm, self.lg_iss - lg))
            self.vm_done = vm; self.lg_done = lg
        if vm: self.wait_vm_seq(vm)
        if lg: self.wait_lg_seq(lg)
        for r in regs: self.pend.pop(r, None)
    def _track(self, regs):
        for t, n in regs:
            if t == "v": self.maxv = max(self.maxv, n + 1)
            if t == "s": self.maxs = max(self.maxs, n + 1)
    def I(self, text):
        text = text.strip()
        mn, _, rest = text.partition(" ")
        ops = split_ops(rest)
        mods = ""
        if ops:
            last = ops[-1].split()
            ops[-1] = last[0]; mods = " ".join(last[1:])
        R = [regs_of(o) for o in ops]
        for r in R: self._track(r)
        flat = lambda L: [x for r in L for x in r]
        if mn.startswith("v_mfma"):
            D, A, B, C = R[0], R[1], R[2], R[3]
            self._touch(D + A + B + C)
            for r in A + B + C:
                if r in self.w_valu: self.need(self.w_valu[r], 2)
            for r in A + B:
                if r in self.w_mfma: self.need(self.w_mfma[r][0], self.w_mfma[r][3])
            for r in C:
                if r in self.w_mfma:
                    p, db, ds, raw, cov = self.w_mfma[r]
                    if not (db == C[0] and ds == len(C)): self.need(p, cov)
            for r in D:
                if r in self.w_mfma and r not in C:
                    self.need(self.w_mfma[r][0], self.w_mfma[r][3])
            self.raw(text); p = self.pos - 1
            raw, cov, war = (8, 6, 3) if "16x16x32" in mn else (12, 10, 7)
            for r in D: self.w_mfma[r] = (p, D[0], len(D), raw, cov); self.w_valu.pop(r, None); self.w_trans.pop(r, None)
            for r in C: self.r_mfma_c[r] = (p, war)
            self.n_mfma += 1
            return
        if mn.startswith("ds_read") or mn.startswith("ds_bpermute") or mn.startswith("ds_swizzle"):
            D = R[0]; S = flat(R[1:])
            self._touch(D + S)
            for r in D + S:
                if r in self.w_mfma: self.need(self.w_mfma[r][0], self.w_mfma[r][3])
            for r in D:
                if r in self.r_mfma_c: self.need(*self.r_mfma_c[r])
            self.raw(text); self.lg_iss += 1
            for r in D: self.pend[r] = ("lg", self.lg_iss); self.w_valu.pop(r, None); self.w_mfma.pop(r, None); self.w_trans.pop(r, None)
            return self.lg_iss
        if mn.startswith("ds_write") or mn.startswith("ds_add"):
            S = flat(R)
            self._touch(S)
            for r in S:
                if r in self.w_mfma: self.need(self.w_mfma[r][0], self.w_mfma[r][3])
            self.raw(text); self.lg_iss += 1
            return self.lg_iss
        if mn.startswith("buffer_load") or mn.startswith("global_load"):
            islds = " lds" in (" " + mods) or "_lds_" in mn
            if islds: D = []; S = flat(R)
            else: D = R[0]; S = flat(R[1:])
            self._touch(D + S)
            for r in D + S:
                if r in self.w_mfma: self.need(self.w_mfma[r][0], self.w_mfma[r][3])
                if r in self.w_sgpr_valu: self.need(self.w_sgpr_valu[r], 5)
            for r in D:
                if r in self.st_data: self.need(self.st_data[r], 2)
                if r in self.r_mfma_c: self.need(*self.r_mfma_c[r])
            if islds: self.need(self.m0_w, 1)
            self.raw(text); self.vm_iss += 1
            for r in D: self.pend[r] = ("vm", self.vm_iss); self.w_valu.pop(r, None); self.w_mfma.pop(r, None); self.w_trans.pop(r, None)
            return self.vm_iss
        if mn.startswith("buffer_store") or mn.startswith("global_store") or mn.startswith("buffer_atomic") or mn.startswith("global_atomic"):
            S = flat(R)
            self._touch(S)
            for r in S:
                if r in self.w_mfma: self.need(self.w_mfma[r][0], self.w_mfma[r][3])
                if r in self.w_sgpr_valu: self.need(self.w_sgpr_valu[r], 5)
            self.raw(text); self.vm_iss += 1
            for r in R[0] + (R[1] if mn.startswith("global") else []): self.st_data[r] = self.pos - 1
            if "atomic" in mn and "sc0" in mods:
                for r in R[0]: self.pend[r] = ("vm", self.vm_iss)
            return self.vm_iss
        if mn.startswith("s_load") or mn.startswith("s_memtime") or mn.startswith("s_memrealtime"):
            self.raw(text); self.lg_iss += 1; self.smem_pending = True
            for r in R[0]: self.pend[r] = ("lg", self.lg_iss)
            return
        if mn.startswith("s_"):
            S = flat(R)
            self._touch(S)
            for r in S:
                if r in self.w_sgpr_valu and not mn.startswith("s_cbranch"): self.need(self.w_sgpr_valu[r], 1)
            self.raw(text)
            if R and ("x", "m0") in R[0] and not mn.startswith("s_cmp"): self.m0_w = self.pos - 1
            if R and not mn.startswith("s_cmp") and not mn.startswith("s_cbranch"):
                for r in R[0]: self.w_sgpr_valu.pop(r, None)
            return
        if mn.startswith("v_"):
            isperm = mn.startswith("v_permlane")
            iscmp = mn.startswith("v_cmp")
            isrl = mn.startswith("v_readfirstlane") or mn.startswith("v_readlane")
            isdpp = "dpp" in mn or any(k in mods for k in ("row_", "quad_perm", "wave_"))
            D = list(R[0]); S = flat(R[1:])
            if mn.startswith("v_add_co") or mn.startswith("v_addc_co") or mn.startswith("v_sub_co"):
                D = R[0] + R[1]; S = flat(R[2:])
            if isperm: D = R[0] + R[1]; S = R[0] + R[1]
            if mn.startswith("v_fmac") or mn.startswith("v_pk_fmac") or isdpp: S = S + R[0]
            if mn.startswith("v_cndmask") and len(R) == 3: S = S + [("x", "vcc")]
            self._touch(D + S)
            for r in D + S:
                if r in self.w_mfma: self.need(self.w_mfma[r][0], self.w_mfma[r][3])
            for r in D:
                if r in self.r_mfma_c: self.need(*self.r_mfma_c[r])
                if r in self.st_data: self.need(self.st_data[r], 2)
            base = mn.replace("_e32", "").replace("_e64", "")
            for r in S:
                if r in self.w_trans and base not in TRANS: self.need(self.w_trans[r], 1)
                if (isperm or isdpp) and r in self.w_valu: self.need(self.w_valu[r], 2)
                if isrl and r in self.w_valu: self.need(self.w_valu[r], 1)
                if r in self.w_sgpr_valu: self.need(self.w_sgpr_valu[r], 2)
            self.raw(text); p = self.pos - 1
            for r in D:
                if r[0] in ("v", "a"):
                    self.w_valu[r] = p; self.w_mfma.pop(r, None)
                    if base in TRANS: self.w_trans[r] = p
                    else: self.w_trans.pop(r, None)
                else:
                    self.w_sgpr_valu[r] = p
            return
        raise ValueError("unknown instr " + text)
    def barrier(self):
        self.raw("s_barrier")
    def skip_adjust(self, pos0):
        d = self.pos - pos0
        for dct in (self.w_valu, self.w_trans, self.st_data, self.w_sgpr_valu):
            for k, v in dct.items():
                if v < pos0: dct[k] = v + d
        for k, v in self.w_mfma.items():
            if v[0] < pos0: self.w_mfma[k] = (v[0] + d,) + v[1:]
        for k, v in self.r_mfma_c.items():
            if v[0] < pos0: self.r_mfma_c[k] = (v[0] + d, v[1])
        if self.m0_w < pos0: self.m0_w += d
    def fence_hazards(self):
        self.nop(16)
    def text(self): return "\n".join(self.lines)

def kernel_text(em, vgpr=None, sgpr=None, wg_y=False):
    v = vgpr or em.maxv
    v = (v + 7) // 8 * 8
    s = sgpr or max(em.maxs, 16)
    body = f""".globl {em.name}
.p2align 8
.type {em.name},@function
{em.name}:
{em.text()}
"""
    desc = f""".amdhsa_kernel {em.name}
  .amdhsa_next_free_vgpr {v}
  .amdhsa_next_free_sgpr {s}
  .amdhsa_accum_offset {v}
  .amdhsa_group_segment_fixed_size 0
  .amdhsa_kernarg_size 112
  .amdhsa_user_sgpr_count 2
  .amdhsa_user_sgpr_kernarg_segment_ptr 1
  .amdhsa_system_sgpr_workgroup_id_x 1
  .amdhsa_float_denorm_mode_32 3
  .amdhsa_float_denorm_mode_16_64 3
.end_amdhsa_kernel
"""
    return body, desc
```

```python
from gen_common import *
LOG2E = 1.4426950408889634
THR = float(2 ** 64)
STAMP = False
STMOD = ''
LDMOD = ''
PRIO = True
EXP = set()
WS_DBG = 0x3000000
UNIT = 8192
SPARE = 16 * UNIT

class Stamper:
    def __init__(self, em, region): self.em = em; self.n = 0; self.region = region; self.names = []
    def __call__(self, name=""):
        if not STAMP: return
        em = self.em
        em.I("s_memtime s[66:67]")
        em.wait_all_lg()
        em.I("v_writelane_b32 v0, s66, %d" % self.n)
        self.names.append(name); self.n += 1
    def first(self):
        if not STAMP: return
        self.em.I("s_memtime s[64:65]")
        self.em.I("s_memrealtime s[72:73]")
    def commit_first(self):
        if not STAMP: return
        self.em.wait_all_lg()
        self.em.I("v_writelane_b32 v0, s64, %d" % self.n); self.n += 1; self.names.append("entry")
    def finish(self, HOFF):
        if not STAMP: return
        em = self.em
        self("end")
        em.I("s_memrealtime s[74:75]")
        em.wait_all_lg()
        em.I("v_writelane_b32 v0, s72, 62")
        em.I("v_writelane_b32 v0, s74, 63")
        make_srd(em, 68, 48, WS_DBG + 0x200000, off_const=WS_DBG + self.region * 0x80000)
        em.I("s_lshl_b32 s66, s2, 3"); em.I("s_add_u32 s66, s66, s32"); em.I("s_lshl_b32 s66, s66, 8")
        em.I("v_lshrrev_b32 v2, 2, v%d" % HOFF)
        em.I("buffer_store_dword v0, v2, s[68:71], s66 offen")
        open("stamps_%d.txt" % self.region, "w").write("\n".join(self.names))

class Addr:
    def __init__(self, reg): self.reg = reg; self.base = 0
    def off(self, em, absoff):
        rel = absoff - self.base
        if rel < 0 or rel > 65535:
            nb = (absoff // 65536) * 65536
            d = nb - self.base
            if d > 0: em.I("v_add_u32 v%d, 0x%x, v%d" % (self.reg, d, self.reg))
            else: em.I("v_subrev_u32 v%d, 0x%x, v%d" % (self.reg, -d, self.reg))
            self.base = nb; rel = absoff - nb
        return rel

class Op:
    def __init__(self, reads, mf, units, chunk, nfill=0):
        self.reads = reads
        self.mf = mf
        self.units = units if isinstance(units, (list, tuple)) else [units]
        self.chunk = chunk
        self.extra = []
        self.pre = []; self.post = []
        self.nfill = nfill

class Pipe:
    def __init__(self, em, af_base, R, st):
        self.em = em; self.af = af_base; self.R = R
        self.ops = []; self.fill = []; self.marks = set()
        self.units = []
        self.tok = {}
        self.next_dma = 0; self.cur = -1; self.st = st
        self.bar_hooks = {}
        self.landed = -1
        self.open = set()
    def unit(self, addr, dma, size=UNIT, last=None, gate=None):
        self.units.append(dict(addr=addr, size=size, dma=dma, last=last if last is not None else -1, gate=gate))
        return len(self.units) - 1
    def add(self, op): self.ops.append(op)
    def finalize(self):
        for op in self.ops:
            for u in op.units: self.units[u]["last"] = max(self.units[u]["last"], op.chunk)
        for u, U in enumerate(self.units):
            fa = -1
            for p in range(u):
                P = self.units[p]
                if P["addr"] < U["addr"] + U["size"] and U["addr"] < P["addr"] + P["size"]: fa = max(fa, P["last"])
            U["free_after"] = fa
    def dma_one(self, maxu=None):
        u = self.next_dma
        while u < len(self.units):
            U = self.units[u]
            if maxu is not None and u > maxu: return False
            if u not in self.tok:
                if U["free_after"] >= 0 and U["free_after"] >= self.cur: return False
                if U["gate"] is None or U["gate"] in self.open:
                    real = U["dma"] is not None and "nodma" not in EXP
                    self.tok[u] = U["dma"](U["addr"]) if real else self.em.vm_iss
                    while self.next_dma in self.tok: self.next_dma += 1
                    if U["dma"] is not None: return True
            u += 1
        return False
    def start_chunk(self, c, i):
        em = self.em
        assert c == self.cur + 1, (c, self.cur)
        em.comment("---- chunk %d" % c)
        for f in self.bar_hooks.get(("pre", c), []): f()
        must = set(); j = i
        while j < len(self.ops) and self.ops[j].chunk == c: must |= set(self.ops[j].units); j += 1
        want = set(must)
        if c > 0:
            for k in range(j, min(j + self.R - 1, len(self.ops))): want |= set(self.ops[k].units)
        while any(u not in self.tok for u in must): assert self.dma_one(), ("dma not issuable", self.next_dma, c)
        t = max([self.landed] + [self.tok[u] for u in want if u in self.tok])
        self.landed = t
        if c in self.stampset: self.st("pre%d" % c)
        em.wait_vm_seq(t)
        if "nobar" not in EXP: em.barrier()
        self.cur = c
        for f in self.bar_hooks.get(("post", c), []): f()
    def issue_read(self, i, half):
        op = self.ops[i]; em = self.em
        if half == 0:
            for f in op.extra: f()
        d = self.af + 4 * (i % self.R) + 2 * half
        kind, a, off = op.reads[half]
        rel = a.off(em, off)
        ins = "ds_read_b64_tr_b16" if kind == "tr" else "ds_read_b64"
        if "nolds" not in EXP: em.I("%s %s, v%d offset:%d" % (ins, vr(d, 2), a.reg, rel))
    def can_read(self, x): return all(u in self.tok and self.tok[u] <= self.landed for u in self.ops[x].units)
    @staticmethod
    def weight(f):
        if callable(f): return 1
        return 2 if f.split()[0] in ("v_exp_f32", "v_rcp_f32") else 1
    def run_fill(self, n):
        full = n
        while n > 0 and self.fill:
            f = self.fill[0]
            if isinstance(f, tuple): self.marks.add(f[1]); self.fill.pop(0); continue
            w = self.weight(f)
            if w > n and n < full: break
            self.fill.pop(0)
            if callable(f): f()
            else: self.em.I(f)
            n -= w
    def flush_fill(self): self.run_fill(10 ** 9)
    def ensure(self, mark):
        while mark not in self.marks:
            assert self.fill, mark
            if isinstance(self.fill[0], tuple): self.marks.add(self.fill.pop(0)[1])
            else: self.run_fill(1)
    def run(self, dma_every=2):
        em = self.em; n = len(self.ops); nxt = 0; since = 0
        cnt = {}
        for op in self.ops: op.cidx = cnt.get(op.chunk, 0); cnt[op.chunk] = op.cidx + 1
        curprio = None
        for i, op in enumerate(self.ops):
            c = op.chunk
            if PRIO:
                pr = 3 - (4 * op.cidx) // cnt[c]
                if pr != curprio: em.raw("s_setprio %d" % pr); curprio = pr
            assert c >= self.cur, (i, c, self.cur)
            while c > self.cur: self.start_chunk(self.cur + 1, i); since = dma_every - 1
            for a in op.pre: a()
            while nxt < 2 * min(n, i + self.R - 1) and self.can_read(nxt // 2):
                self.issue_read(nxt // 2, nxt % 2); nxt += 1
            assert nxt >= 2 * (i + 1), (i, op.units, self.landed)
            d = self.af + 4 * (i % self.R)
            for k, (D, B, C) in enumerate(op.mf):
                Cs = C if isinstance(C, str) else vr(C, 4)
                em.I("v_mfma_f32_16x16x32_bf16 %s, %s, %s, %s" % (vr(D, 4), vr(d, 4), vr(B, 4), Cs))
                if nxt < 2 * min(n, i + self.R) and self.can_read(nxt // 2):
                    self.issue_read(nxt // 2, nxt % 2); nxt += 1
                self.run_fill(op.nfill)
            since += 1
            if since >= dma_every:
                since = 0
                self.dma_one()
            for a in op.post: a()

def wg_decode(em):
    em.I("v_lshrrev_b32 v1, 6, v0")
    em.I("v_readfirstlane_b32 s32, v1")
    em.I("s_and_b32 s33, s2, 7")
    em.I("s_lshl_b32 s33, s33, 1")
    em.I("s_bfe_u32 s34, s2, 0x10003")
    em.I("s_add_u32 s33, s33, s34")
    em.I("s_lshr_b32 s34, s2, 4")
    em.I("s_and_b32 s35, s32, 3")
    em.I("s_lshr_b32 s36, s32, 2")
    em.I("s_lshl_b32 s37, s34, 2")
    em.I("s_add_u32 s37, s37, s35")

class SRot:
    def __init__(self, lo=56, n=8): self.lo = lo; self.n = n; self.i = 0
    def __call__(self):
        self.i = (self.i + 1) % self.n
        return self.lo + self.i

def pat256_src(em, dst, L, t0, t1, rowstride, wrow_sgpr_bytes):
    I = em.I
    I("v_lshrrev_b32 v%d, 4, v%d" % (t0, L))
    I("s_and_b32 s50, s32, 1"); I("s_lshl_b32 s50, s50, 2")
    I("v_add_u32 v%d, s50, v%d" % (t1, t0))
    I("v_lshlrev_b32 v%d, 1, v%d" % (t1, t1))
    I("v_and_b32 v%d, 15, v%d" % (dst, L))
    I("v_xor_b32 v%d, v%d, v%d" % (dst, dst, t1))
    I("v_lshlrev_b32 v%d, 4, v%d" % (dst, dst))
    I("s_mov_b32 s50, %d" % rowstride)
    I("v_mul_lo_u32 v%d, v%d, s50" % (t0, t0))
    I("v_add_u32 v%d, v%d, v%d" % (dst, dst, t0))
    I("v_add_u32 v%d, s%d, v%d" % (dst, wrow_sgpr_bytes, dst))

def pat128_src(em, dst, L, t0, t1, rowstride, wrow_sgpr_bytes):
    I = em.I
    I("v_lshrrev_b32 v%d, 3, v%d" % (t0, L))
    I("v_bfe_u32 v%d, v%d, 1, 2" % (t1, t0))
    I("v_lshlrev_b32 v%d, 1, v%d" % (t1, t1))
    I("v_and_b32 v%d, 7, v%d" % (dst, L))
    I("v_xor_b32 v%d, v%d, v%d" % (dst, dst, t1))
    I("v_lshlrev_b32 v%d, 4, v%d" % (dst, dst))
    I("s_mov_b32 s50, %d" % rowstride)
    I("v_mul_lo_u32 v%d, v%d, s50" % (t0, t0))
    I("v_add_u32 v%d, v%d, v%d" % (dst, dst, t0))
    I("v_add_u32 v%d, s%d, v%d" % (dst, wrow_sgpr_bytes, dst))

def rd256_addr(em, dst, L, t0, t1, q_sgpr=None, q_const=0):
    I = em.I
    I("v_lshrrev_b32 v%d, 2, v%d" % (t0, L))
    I("v_and_b32 v%d, 7, v%d" % (t1, t0))
    if q_sgpr is not None: I("v_xor_b32 v%d, s%d, v%d" % (t1, q_sgpr, t1))
    if q_const: I("v_xor_b32 v%d, %d, v%d" % (t1, q_const, t1))
    I("v_lshlrev_b32 v%d, 5, v%d" % (t1, t1))
    I("v_lshl_add_u32 v%d, v%d, 8, v%d" % (t1, t0, t1))
    I("v_and_b32 v%d, 3, v%d" % (t0, L))
    I("v_lshl_add_u32 v%d, v%d, 3, v%d" % (dst, t0, t1))

def rd128_addr(em, dst, L, t0, t1, q_sgpr=None, q_const=0):
    I = em.I
    I("v_lshrrev_b32 v%d, 2, v%d" % (t0, L))
    I("v_bfe_u32 v%d, v%d, 1, 2" % (t1, t0))
    if q_sgpr is not None: I("v_xor_b32 v%d, s%d, v%d" % (t1, q_sgpr, t1))
    if q_const: I("v_xor_b32 v%d, %d, v%d" % (t1, q_const, t1))
    I("v_lshlrev_b32 v%d, 5, v%d" % (t1, t1))
    I("v_lshl_add_u32 v%d, v%d, 7, v%d" % (t1, t0, t1))
    I("v_and_b32 v%d, 3, v%d" % (t0, L))
    I("v_lshl_add_u32 v%d, v%d, 3, v%d" % (dst, t0, t1))

def xg_reduce(op, v, t):
    return ["v_mov_b32 v%d, v%d" % (t, v), "v_permlane16_swap_b32 v%d, v%d" % (v, t), "%s v%d, v%d, v%d" % (op, v, v, t),
            "v_mov_b32 v%d, v%d" % (t, v), "v_permlane32_swap_b32 v%d, v%d" % (v, t), "%s v%d, v%d, v%d" % (op, v, v, t)]
```

```python
from gen_common import *
import gen2
from gen2 import *

def mk_dma(em, sreg, vo, srd, so=None, so_sgpr=None, so_add=0, mod=None):
    def f(lds):
        s = sreg()
        if so_sgpr is not None: em.I("s_add_u32 s%d, s%d, 0x%x" % (s, so_sgpr, so_add))
        else: em.I("s_mov_b32 s%d, 0x%x" % (s, so))
        em.I("s_add_u32 m0, s39, 0x%x" % lds)
        return em.I("buffer_load_dwordx4 v%d, s[%d:%d], s%d offen%s lds" % (vo, srd, srd + 3, s, gen2.LDMOD if mod is None else mod))
    return f

def z_store_fn(em, sreg, ZA, ZP, HOFF, S_P):
    I = em.I
    def z_store(G):
        za = ZA[G % 2]; out = []
        npair = 2 if G < 4 else 1
        for p in range(npair):
            for nt in range(2):
                d = ZP + 8 * p + 4 * nt
                for i in range(2):
                    a = za + 8 * (2 * p + i) + 4 * nt
                    out.append("v_cvt_pk_bf16_f32 v%d, v%d, v%d" % (d + 2 * i, a, a + 1))
                    out.append("v_cvt_pk_bf16_f32 v%d, v%d, v%d" % (d + 2 * i + 1, a + 2, a + 3))
            def stf(p=p):
                s = sreg()
                I("s_lshl_b32 s%d, s36, %d" % (s, 12 if G < 4 else 11))
                I("s_add_u32 s%d, s%d, %d" % (s, s, (4 * G + p) * 2048))
                for nt in range(2 if "nost" not in gen2.EXP else 0):
                    I("buffer_store_dwordx4 %s, v%d, s[%d:%d], s%d offen offset:%d%s" % (vr(ZP + 8 * p + 4 * nt, 4), HOFF, S_P, S_P + 3, s, 1024 * nt, gen2.STMOD))
            out.append(stf)
        return out
    return z_store

def h_src(em, VH, HOFF):
    I = em.I
    I("s_lshr_b32 s50, s32, 1"); I("s_mul_i32 s50, s50, 36864")
    I("s_and_b32 s51, s32, 1"); I("s_lshl_b32 s51, s51, 10"); I("s_add_u32 s50, s50, s51")
    I("v_add_u32 v%d, s50, v%d" % (VH, HOFF))

def gen_attn(ctx=None):
    em = Emit("attn_kernel") if ctx is None else ctx.em
    I = em.I
    if ctx is None:
        I("s_cmp_ge_u32 s2, 256")
        I("s_cbranch_scc1 L_attn_end")
        st = Stamper(em, 0); st.first()
    else: st = ctx.st
    load_ptr(em, 40, "wq"); load_ptr(em, 48, "ws"); load_ptr(em, 42, "k"); load_ptr(em, 44, "v"); load_ptr(em, 46, "wo")
    if ctx is None: wg_decode(em)
    hmod, hgate = ("", None) if ctx is None else (" sc1", "h")
    S_WQ, S_K, S_V, S_WO, S_H, S_P = 8, 12, 16, 20, 24, 28
    HOFF, VQ, VK, VV, VWO, VWL, L = 1, 2, 3, 4, 5, 6, 7
    AQr = 8; AF = 16; R = 4
    Ls, PS, TM, ET = 32, 34, 36, 40
    QACC = 144
    QB = 112; OACC = 144; Sb = (48, 64); Pb = (80, 88); NEGM = 96
    HBr = (48, 56)
    AKr = 208; AOo = 216; AOp = 220; ALo = 224; ALp = 226; XW = 228; XR = 229; VH = 230; HR = 231; AVr = 232
    OBo = 48; OBp = 80; ZA = (112, 144); ZP = 176
    t0, t1 = 36, 37
    NS = 20
    sreg = SRot()
    pipe = Pipe(em, AF, R, st); pipe.stampset = {0, 1, 2, 4, 6, 8, 9, 10, 12, 14, 16, 17, 18, 20, 22, 24}
    if ctx is None: I("v_and_b32 v%d, 63, v0" % L)
    I("v_lshlrev_b32 v%d, 4, v%d" % (HOFF, L))
    I("s_lshl_b32 s39, s32, 10")
    I("s_lshl_b32 s51, s32, 15")
    pat256_src(em, VQ, L, t0, t1, 8192, 51)
    h_src(em, VH, HOFF)
    I("s_lshl_b32 s50, s33, 9")
    make_srd(em, S_WQ, 40, 576 * 8192, off_sgpr=50)
    I("s_mul_i32 s50, s34, %d" % (4 * 36864))
    make_srd(em, S_H, 48, WS_H + FRAG, off_const=WS_H, off_sgpr=50)
    slot = [0]
    def nxt_addr(n=1):
        a = (slot[0] % NS) * UNIT; slot[0] += n; return a
    uH, uW = {}, {}
    for c in range(9):
        for ks in (2 * c, 2 * c + 1): uH[ks] = pipe.unit(nxt_addr(), mk_dma(em, sreg, VH, S_H, ks * 2048, mod=hmod), gate=hgate)
        for ks in (2 * c, 2 * c + 1):
            for hd in range(2): uW[ks, hd] = pipe.unit(nxt_addr(), mk_dma(em, sreg, VQ, S_WQ, ks * 32 * 8192 + hd * 256))
    kv_chunk = {9: [("K", 0), ("K", 1), ("K", 2), ("V", 0)], 16: [("K", 15), ("V", 13), ("V", 14), ("V", 15)]}
    for j in range(1, 7): kv_chunk[9 + j] = [("K", 2 * j + 1), ("V", 2 * j - 1), ("K", 2 * j + 2), ("V", 2 * j)]
    uKV, cKV = {}, {}
    for c in range(9, 17):
        for kind, tile in kv_chunk[c]:
            f = mk_dma(em, sreg, VK, S_K, tile * 8192) if kind == "K" else mk_dma(em, sreg, VV, S_V, tile * 8192)
            uKV[kind, tile] = pipe.unit(nxt_addr(), f); cKV[kind, tile] = c
    XBASE = nxt_addr(8)
    assert XBASE + 8 * UNIT <= NS * UNIT
    uX = pipe.unit(XBASE, None, size=8 * UNIT, last=17)
    while slot[0] % 4: slot[0] += 1
    uO = {}
    for G in range(4):
        for half in range(2):
            for head in range(2):
                for sl in range(2):
                    s_ = 2 * half + sl
                    uO[G, head, s_] = pipe.unit(nxt_addr(), mk_dma(em, sreg, VWO, S_WO, (head * 128 + 32 * s_) * 1152 + G * 256))
    uL = [pipe.unit(nxt_addr(), mk_dma(em, sreg, VWL, S_WO, (y * 64) * 1152 + 1024)) for y in range(4)]
    ua = lambda u: pipe.units[u]["addr"]

    AQ = [Addr(AQr + q) for q in range(8)]; AV = [Addr(AVr + q) for q in range(8)]
    AK = [[Addr(AKr + 2 * s + rd) for rd in range(2)] for s in range(4)]
    AH = Addr(HR)
    Aoo = [Addr(AOo + i) for i in range(4)]; Aop = [Addr(AOp + i) for i in range(4)]
    Alo = [Addr(ALo + i) for i in range(2)]; Alp = [Addr(ALp + i) for i in range(2)]

    def setup_rest():
        I("s_lshl_b32 s50, s33, 19")
        make_srd(em, S_K, 42, 16 * 524288, off_const=1536 * 256, off_sgpr=50)
        make_srd(em, S_V, 44, 16 * 524288, off_const=1536 * 256, off_sgpr=50)
        I("s_mul_i32 s50, s33, %d" % (256 * 1152))
        make_srd(em, S_WO, 46, 4096 * 1152, off_sgpr=50)
        I("s_mul_i32 s50, s37, 36864")
        I("s_mul_i32 s51, s33, 0x%x" % FRAG)
        I("s_add_u32 s50, s50, s51")
        make_srd(em, S_P, 48, WS_END, off_const=WS_P, off_sgpr=50)
        I("s_mov_b32 s52, %s" % f32(THR))
        I("s_mov_b32 s53, %s" % f32(LOG2E / (128 ** 0.5)))
        pat256_src(em, VV, L, t0, t1, 256, 39)
        I("s_mul_i32 s51, s32, %d" % (4 * 1152))
        pat256_src(em, VWO, L, t0, t1, 1152, 51)
        I("s_mul_i32 s51, s32, %d" % (8 * 1152))
        pat128_src(em, VWL, L, t0, t1, 1152, 51)
        I("v_lshrrev_b32 v%d, 4, v%d" % (t0, L))
        I("s_lshl_b32 s50, s35, 2")
        I("v_add_u32 v%d, s50, v%d" % (t1, t0))
        I("v_and_b32 v%d, 15, v%d" % (VK, L))
        I("v_xor_b32 v%d, v%d, v%d" % (VK, VK, t1))
        I("v_lshlrev_b32 v%d, 4, v%d" % (VK, VK))
        I("v_lshl_add_u32 v%d, v%d, 8, v%d" % (VK, t0, VK))
        I("v_add_u32 v%d, s39, v%d" % (VK, VK))
        rd256_addr(em, AVr, L, t0, t1)
        I("s_lshl_b32 s54, s36, 13")
        I("v_add_u32 v%d, s54, v%d" % (AQr, AVr))
        for q in range(1, 8):
            I("v_xor_b32 v%d, %d, v%d" % (AQr + q, 32 * q, AQr)); I("v_xor_b32 v%d, %d, v%d" % (AVr + q, 32 * q, AVr))
        I("s_lshl_b32 s50, s35, 11")
        I("v_add_u32 v%d, s50, v%d" % (HR, HOFF))
        I("v_and_b32 v%d, 15, v%d" % (t0, L)); I("v_lshrrev_b32 v%d, 5, v%d" % (t1, L))
        I("v_xor_b32 v%d, v%d, v%d" % (t1, t1, t0)); I("v_lshlrev_b32 v%d, 4, v%d" % (t1, t1))
        I("v_lshl_add_u32 v%d, v%d, 8, v%d" % (t1, t0, t1)); I("v_bfe_u32 v%d, v%d, 4, 1" % (t0, L))
        I("v_lshl_add_u32 v%d, v%d, 3, v%d" % (AKr, t0, t1))
        for i in range(1, 8): I("v_xor_b32 v%d, %d, v%d" % (AKr + i, 32 * i, AKr))
        I("s_lshl_b32 s55, s36, 7")
        I("v_xor_b32 v%d, s55, v%d" % (AOo, AVr))
        I("s_lshl_b32 s50, s36, 14"); I("s_xor_b32 s51, s50, 16384")
        I("v_add_u32 v%d, s51, v%d" % (AOp, AOo))
        I("v_add_u32 v%d, s50, v%d" % (AOo, AOo))
        for i in range(1, 4):
            I("v_xor_b32 v%d, %d, v%d" % (AOo + i, 32 * i, AOo)); I("v_xor_b32 v%d, %d, v%d" % (AOp + i, 32 * i, AOp))
        I("s_lshl_b32 s55, s36, 1")
        rd128_addr(em, ALo, L, t0, t1, q_sgpr=55)
        I("v_add_u32 v%d, s51, v%d" % (ALp, ALo))
        I("v_add_u32 v%d, s50, v%d" % (ALo, ALo))
        I("v_xor_b32 v%d, 32, v%d" % (ALo + 1, ALo)); I("v_xor_b32 v%d, 32, v%d" % (ALp + 1, ALp))
        I("s_lshl_b32 s50, s32, 13"); I("s_add_u32 s50, s50, %d" % XBASE)
        I("v_add_u32 v%d, s50, v%d" % (XW, HOFF))
        I("s_xor_b32 s50, s32, 4"); I("s_lshl_b32 s50, s50, 13"); I("s_add_u32 s50, s50, %d" % XBASE)
        I("v_add_u32 v%d, s50, v%d" % (XR, HOFF))

    def q_convert(q):
        out = []
        for nt in range(2):
            a = QACC + 8 * q + 4 * nt
            for r in range(4): out.append("v_mul_f32 v%d, s53, v%d" % (a + r, a + r))
            d = QB + 8 * (q // 2) + 4 * nt + 2 * (q % 2)
            out.append("v_cvt_pk_bf16_f32 v%d, v%d, v%d" % (d, a, a + 1))
            out.append("v_cvt_pk_bf16_f32 v%d, v%d, v%d" % (d + 1, a + 2, a + 3))
        out.append(("mark", "q%d" % q))
        return out
    for ks in range(18):
        base = ua(uW[ks, 0]); hb = HBr[ks % 2]
        for q in range(8):
            reads = [("tr", AQ[q], base + rd * 4096) for rd in range(2)]
            mf = [(QACC + 8 * q + 4 * nt, hb + 4 * nt, "0" if ks == 0 else QACC + 8 * q + 4 * nt) for nt in range(2)]
            op = Op(reads, mf, [uW[ks, 0], uW[ks, 1], uH[ks]], ks // 2, nfill=2)
            if q == 0:
                def hread(ks=ks, hb=hb):
                    for nt in range(2):
                        rel = AH.off(em, ua(uH[ks]) + 1024 * nt)
                        I("ds_read_b128 %s, v%d offset:%d" % (vr(hb + 4 * nt, 4), HR, rel))
                op.extra.append(hread)
            if ks == 17 and q >= 1: op.post.append(lambda q=q: pipe.fill.extend(q_convert(q - 1)))
            if ks == 17 and q == 7: op.post.append(lambda: pipe.fill.extend(q_convert(7)))
            pipe.add(op)
    def qk_ops(tile, Sreg, cinit, smajor=False):
        u = uKV["K", tile]; loc = ua(u)
        order = [(kt, s) for kt in range(2) for s in range(4)] if not smajor else [(kt, s) for s in range(4) for kt in range(2)]
        ops = []
        for kt, s in order:
            reads = [("b64", AK[s][rd], loc + kt * 4096) for rd in range(2)]
            mf = []
            for nt in range(2):
                D = Sreg + 8 * kt + 4 * nt
                C = D if s > 0 else (cinit if isinstance(cinit, str) else cinit + 4 * nt)
                mf.append((D, QB + 8 * s + 4 * nt, C))
            o = Op(reads, mf, u, cKV["K", tile], nfill=2); o.s = s
            ops.append(o)
        return ops
    def pv_ops(tile, Preg, first):
        u = uKV["V", tile]; loc = ua(u)
        ops = []
        for q in range(8):
            reads = [("tr", AV[q], loc + rd * 4096) for rd in range(2)]
            mf = [(OACC + 8 * q + 4 * nt, Preg + 4 * nt, "0" if first else OACC + 8 * q + 4 * nt) for nt in range(2)]
            ops.append(Op(reads, mf, u, cKV["V", tile], nfill=2))
        return ops
    def softmax_fast(Sreg, Preg):
        out = []; k = 0
        for nt in range(2):
            for kt in range(2):
                a = Sreg + 8 * kt + 4 * nt
                e = ET + 4 * (k % 2); k += 1
                for r in range(4): out.append("v_exp_f32 v%d, v%d" % (e + r, a + r))
                if kt == 0:
                    out.append("v_add_f32 v%d, v%d, v%d" % (PS + nt, e, e + 1))
                    out.append("v_cvt_pk_bf16_f32 v%d, v%d, v%d" % (Preg + 4 * nt + 2 * kt, e, e + 1))
                    out.append("v_add_f32 v%d, v%d, v%d" % (PS + nt, PS + nt, e + 2))
                    out.append("v_cvt_pk_bf16_f32 v%d, v%d, v%d" % (Preg + 4 * nt + 2 * kt + 1, e + 2, e + 3))
                    out.append("v_add_f32 v%d, v%d, v%d" % (PS + nt, PS + nt, e + 3))
                    out.append("s_nop 0")
                else:
                    out.append("v_add_f32 v%d, v%d, v%d" % (PS + nt, PS + nt, e))
                    out.append("v_cvt_pk_bf16_f32 v%d, v%d, v%d" % (Preg + 4 * nt + 2 * kt, e, e + 1))
                    out.append("v_add_f32 v%d, v%d, v%d" % (PS + nt, PS + nt, e + 1))
                    out.append("v_cvt_pk_bf16_f32 v%d, v%d, v%d" % (Preg + 4 * nt + 2 * kt + 1, e + 2, e + 3))
                    out.append("v_add_f32 v%d, v%d, v%d" % (PS + nt, PS + nt, e + 2))
                    out.append("v_add_f32 v%d, v%d, v%d" % (PS + nt, PS + nt, e + 3))
        return [x for x in out if x != "s_nop 0"]
    def slow_list(tau, first):
        Sreg, Preg, Snext = Sb[tau % 2], Pb[tau % 2], Sb[(tau + 1) % 2]
        out = []; fix = []
        for nt in range(2):
            mx, t, al = TM + nt, TM + 2, TM + 3
            v = [Sreg + 8 * kt + 4 * nt + r for kt in range(2) for r in range(4)]
            out.append("v_max3_f32 v%d, v%d, v%d, v%d" % (mx, v[0], v[1], v[2]))
            out.append("v_max3_f32 v%d, v%d, v%d, v%d" % (mx, mx, v[3], v[4]))
            out.append("v_max3_f32 v%d, v%d, v%d, v%d" % (mx, mx, v[5], v[6]))
            out.append("v_max_f32 v%d, v%d, v%d" % (mx, mx, v[7]))
            out += xg_reduce("v_max_f32", mx, t)
            out.append("v_ceil_f32 v%d, v%d" % (mx, mx))
            if not first:
                out.append("v_max_f32 v%d, 0, v%d" % (mx, mx))
                out.append("v_sub_f32 v%d, 0, v%d" % (al, mx))
                out.append("v_exp_f32 v%d, v%d" % (al, al))
                for q in range(8):
                    for r in range(4): out.append("v_mul_f32 v%d, v%d, v%d" % (OACC + 8 * q + 4 * nt + r, OACC + 8 * q + 4 * nt + r, al))
                out.append("v_mul_f32 v%d, v%d, v%d" % (Ls + nt, Ls + nt, al))
                for r in range(4): out.append("v_sub_f32 v%d, v%d, v%d" % (NEGM + 4 * nt + r, NEGM + 4 * nt + r, mx))
            else:
                for r in range(4): out.append("v_sub_f32 v%d, 0, v%d" % (NEGM + 4 * nt + r, mx))
            for x in v: out.append("v_sub_f32 v%d, v%d, v%d" % (x, x, mx))
            if tau < 15:
                for x in v: fix.append("v_sub_f32 v%d, v%d, v%d" % (x - Sreg + Snext, x - Sreg + Snext, mx))
        return out + softmax_fast(Sreg, Preg), fix
    slow_blocks = []
    def check(tau):
        def f():
            pipe.flush_fill()
            I("v_add_f32 v%d, v%d, v%d" % (TM, PS, PS + 1))
            I("v_cmp_ngt_f32 vcc, s52, v%d" % TM)
            if not gen2.EXP: I("s_cbranch_vccnz L_slow_%d" % tau)
            em.label("L_back_%d" % tau)
            I("v_add_f32 v%d, v%d, v%d" % (Ls, Ls, PS))
            I("v_add_f32 v%d, v%d, v%d" % (Ls + 1, Ls + 1, PS + 1))
            slow_blocks.append(tau)
        return f
    ops = qk_ops(0, Sb[0], "0", smajor=True)
    for o in ops: o.pre.append(lambda s=o.s: [pipe.ensure("q%d" % (2 * s)), pipe.ensure("q%d" % (2 * s + 1))])
    for o in ops: o.nfill = 3; pipe.add(o)
    ops = qk_ops(1, Sb[1], "0")
    sl0, fix0 = slow_list(0, True)
    ops[1].pre.append(lambda: pipe.fill.extend(sl0))
    def first_done():
        pipe.flush_fill()
        for x in fix0: I(x)
        I("v_mov_b32 v%d, v%d" % (Ls, PS)); I("v_mov_b32 v%d, v%d" % (Ls + 1, PS + 1))
    ops[-1].post.append(first_done)
    for o in ops: o.nfill = 4; pipe.add(o)
    for tau in range(1, 16):
        ops = []
        if tau + 1 <= 15: ops += qk_ops(tau + 1, Sb[(tau + 1) % 2], NEGM)
        ops += pv_ops(tau - 1, Pb[(tau - 1) % 2], tau == 1)
        if tau == 15:
            for o in ops: o.nfill = 4
        sm = softmax_fast(Sb[tau % 2], Pb[tau % 2]) if "nosm" not in gen2.EXP else []
        ops[0].pre.append(lambda sm=sm: pipe.fill.extend(sm))
        ops[-1].post.append(check(tau))
        for o in ops: pipe.add(o)
    INV = TM + 2
    def norm_prep():
        for nt in range(2):
            for x in xg_reduce("v_add_f32", Ls + nt, TM): I(x)
            I("v_rcp_f32 v%d, v%d" % (INV + nt, Ls + nt))
    def o_norm(q):
        out = []
        for nt in range(2):
            a = OACC + 8 * q + 4 * nt
            for r in range(4): out.append("v_mul_f32 v%d, v%d, v%d" % (a + r, a + r, INV + nt))
            d = OBo + 8 * (q // 2) + 4 * nt + 2 * (q % 2)
            out.append("v_cvt_pk_bf16_f32 v%d, v%d, v%d" % (d, a, a + 1))
            out.append("v_cvt_pk_bf16_f32 v%d, v%d, v%d" % (d + 1, a + 2, a + 3))
        if q % 2 == 1:
            for nt in range(2):
                f = 2 * (q // 2) + nt
                out.append("ds_write_b128 v%d, %s offset:%d" % (XW, vr(OBo + 4 * f, 4), 1024 * f))
        return out
    ops = pv_ops(15, Pb[1], False)
    ops[0].post.append(norm_prep)
    for q in range(1, 8): ops[q].post.append(lambda q=q: pipe.fill.extend(o_norm(q - 1)))
    ops[7].post.append(lambda: [pipe.fill.extend(o_norm(7)), pipe.flush_fill()])
    for o in ops: o.nfill = 4; pipe.add(o)
    pipe.bar_hooks[("pre", 17)] = [em.wait_all_lg]
    def x_read():
        for f in range(8): I("ds_read_b128 %s, v%d offset:%d" % (vr(OBp + 4 * f, 4), XR, 1024 * f))
    pipe.bar_hooks[("post", 17)] = [x_read]
    z_store = z_store_fn(em, sreg, ZA, ZP, HOFF, S_P)
    for G in range(4):
        za = ZA[G % 2]; ops = []
        for half in range(2):
            c = 17 + 2 * G + half; base = ua(uO[G, 0, 2 * half])
            for own in (True, False):
                for sl in range(2):
                    s = 2 * half + sl
                    for i in range(4):
                        A = (Aoo if own else Aop)[i]
                        reads = [("tr", A, base + sl * UNIT + rd * 4096) for rd in range(2)]
                        Bf = (OBo if own else OBp) + 8 * s
                        init = (half == 0 and own and sl == 0)
                        mf = [(za + 8 * i + 4 * nt, Bf + 4 * nt, "0" if init else za + 8 * i + 4 * nt) for nt in range(2)]
                        ops.append(Op(reads, mf, [uO[G, 0, s], uO[G, 1, s]], c, nfill=1))
        if G > 0: ops[2].pre.append(lambda G=G: pipe.fill.extend(z_store(G - 1)))
        for o in ops: pipe.add(o)
    c = 25; base = ua(uL[0]); za = ZA[0]; ops = []
    for own in (True, False):
        for s in range(4):
            for i in range(2):
                A = (Alo if own else Alp)[i]
                reads = [("tr", A, base + (s // 2) * UNIT + (s % 2) * 4096 + rd * 2048) for rd in range(2)]
                Bf = (OBo if own else OBp) + 8 * s
                init = own and s == 0
                mf = [(za + 8 * i + 4 * nt, Bf + 4 * nt, "0" if init else za + 8 * i + 4 * nt) for nt in range(2)]
                ops.append(Op(reads, mf, [uL[s // 2], uL[2 + s // 2]], c, nfill=1))
    ops[2].pre.append(lambda: pipe.fill.extend(z_store(3)))
    ops[-1].post.append(lambda: [pipe.flush_fill(), pipe.fill.extend(z_store(4)), pipe.flush_fill()])
    for o in ops: pipe.add(o)
    pipe.finalize()
    assert pipe.units[uX]["free_after"] < 16
    def tail():
        for tau in slow_blocks:
            em.label("L_slow_%d" % tau)
            em.nop(16)
            a, b = slow_list(tau, False)
            for x in a + b: I(x)
            em.nop(4)
            em.raw("s_branch L_back_%d" % tau)
    if ctx is not None:
        while pipe.dma_one(maxu=17): pass
        ctx.front(setup_rest)
        pipe.open.add("h")
        while pipe.dma_one(maxu=17): pass
        pipe.run()
        return tail
    for _ in range(6): pipe.dma_one()
    setup_rest()
    for _ in range(6): pipe.dma_one()
    st.commit_first(); st("setup done")
    pipe.run()
    st.finish(HOFF)
    em.raw("s_endpgm")
    tail()
    em.label("L_attn_end")
    em.raw("s_endpgm")
    return em, "grid=(256,1,1) block=(512,1,1) lds=163840"

def gen_ffn(ctx=None):
    em = Emit("ffn_kernel") if ctx is None else ctx.em
    I = em.I
    if ctx is None:
        I("s_cmp_ge_u32 s2, 256")
        I("s_cbranch_scc1 L_ffn_end")
        st = Stamper(em, 1); st.first()
    else: st = ctx.st
    load_ptr(em, 40, "wg"); load_ptr(em, 42, "wu"); load_ptr(em, 48, "ws"); load_ptr(em, 44, "wd")
    if ctx is None: wg_decode(em)
    hmod, hgate = ("", None) if ctx is None else (" sc1", "h")
    PBASE, PTOP = (WS_P, WS_END) if ctx is None else (ctx.p2, ctx.top)
    S_W, S_D, S_H, S_P = 8, 16, 24, 28
    HOFF, VB, VS, VD, VDL, L = 1, 2, 3, 4, 5, 7
    AGb, AGs, XW = 8, 6, 10
    TM = 11
    XR = 15
    AF = 16; R = 4
    GA = [32, 48, 64, 80]
    AB = 96
    VH, HR = 96, 97
    HB = 112
    sreg = SRot()
    t0, t1 = 64, 65
    pipe = Pipe(em, AF, R, st); pipe.stampset = set(range(0, 40, 2)) | {1}
    if ctx is None: I("v_and_b32 v%d, 63, v0" % L)
    I("v_lshlrev_b32 v%d, 4, v%d" % (HOFF, L))
    I("s_lshl_b32 s39, s32, 10")
    I("s_and_b32 s54, s33, 1")
    I("s_lshl_b32 s55, s54, 6")
    I("s_xor_b32 s54, s54, 1")
    I("s_lshl_b32 s54, s54, 9")
    I("s_mul_i32 s51, s35, %d" % (8 * 9216))
    I("s_add_u32 s51, s51, s55")
    pat128_src(em, VB, L, t0, t1, 9216, 51)
    if ctx is None: h_src(em, VH, HOFF)
    I("s_cmp_eq_u32 s36, 0")
    I("s_cselect_b32 s46, s40, s42")
    I("s_cselect_b32 s47, s41, s43")
    I("s_mul_i32 s50, s33, 576")
    make_srd(em, S_W, 46, 576 * 9216, off_sgpr=50)
    I("s_mul_i32 s50, s34, %d" % (4 * 36864))
    make_srd(em, S_H, 48, WS_H2 + FRAG, off_const=WS_H2, off_sgpr=50)
    slot = [0]; NSv = [20]
    def nxt_addr():
        a = (slot[0] % NSv[0]) * UNIT; slot[0] += 1; return a
    uH, uB, cB = {}, {}, {}
    for ks in range(18):
        uH[ks] = pipe.unit(nxt_addr(), mk_dma(em, sreg, VH, S_H, ks * 2048, mod=hmod), gate=hgate)
        uB[0, ks] = pipe.unit(nxt_addr(), mk_dma(em, sreg, VB, S_W, ks * 32 * 9216)); cB[0, ks] = ks // 3
    slot[0] = 0; NSv[0] = 16
    n = 0
    for b in range(1, 4):
        for ks in range(18):
            uB[b, ks] = pipe.unit(nxt_addr(), mk_dma(em, sreg, VB, S_W, ks * 32 * 9216 + b * 128)); cB[b, ks] = 6 + n // 4; n += 1
    uS, cS = {}, {}
    for d in range(9):
        uS[d] = pipe.unit(nxt_addr(), mk_dma(em, sreg, VS, S_W, d * 64 * 9216)); cS[d] = 6 + n // 4; n += 1
    uD, cD = {}, {}
    for G in range(4):
        for k in range(9):
            f = mk_dma(em, sreg, VD, S_D, so_sgpr=44, so_add=k * 32 * 1152 + G * 256) if k < 8 else mk_dma(em, sreg, VD, S_D, so_sgpr=45, so_add=G * 256)
            uD[G, k] = pipe.unit(nxt_addr(), f); cD[G, k] = 6 + n // 4; n += 1
    uL, cL = {}, {}
    for y in range(5):
        f = mk_dma(em, sreg, VDL, S_D, so_sgpr=44, so_add=y * 64 * 1152 + 1024) if y < 4 else mk_dma(em, sreg, VDL, S_D, so_sgpr=45, so_add=1024)
        uL[y] = pipe.unit(nxt_addr(), f); cL[y] = 6 + n // 4; n += 1
    ua = lambda u: pipe.units[u]["addr"]
    Agb = [Addr(AGb), Addr(AGb + 1)]; Ags = Addr(AGs); AH = Addr(HR)
    def setup_rest():
        I("s_mul_i32 s50, s33, %d" % (288 * 1152))
        make_srd(em, S_D, 44, 4608 * 1152, off_sgpr=50)
        I("s_mul_i32 s50, s37, 36864")
        I("s_mul_i32 s51, s33, 0x%x" % FRAG)
        I("s_add_u32 s50, s50, s51")
        make_srd(em, S_P, 48, PTOP, off_const=PBASE, off_sgpr=50)
        if ctx is not None: h_src(em, VH, HOFF)
        I("s_mul_i32 s44, s55, 576")
        I("s_mul_i32 s45, s54, 576")
        I("s_mov_b32 s53, %s" % f32(-LOG2E))
        I("v_lshrrev_b32 v%d, 2, v%d" % (t0, L))
        I("v_bfe_u32 v%d, v%d, 2, 1" % (t1, t0))
        I("v_lshlrev_b32 v%d, 1, v%d" % (t1, t1))
        I("v_and_b32 v%d, 3, v%d" % (VS, L))
        I("v_xor_b32 v%d, v%d, v%d" % (VS, VS, t1))
        I("v_lshlrev_b32 v%d, 4, v%d" % (VS, VS))
        I("s_movk_i32 s50, 9216")
        I("v_mul_lo_u32 v%d, v%d, s50" % (t0, t0))
        I("v_add_u32 v%d, v%d, v%d" % (VS, VS, t0))
        I("s_mul_i32 s51, s35, %d" % (16 * 9216))
        I("s_add_u32 s51, s51, s54")
        I("v_add_u32 v%d, s51, v%d" % (VS, VS))
        I("s_mul_i32 s51, s32, %d" % (4 * 1152))
        pat256_src(em, VD, L, t0, t1, 1152, 51)
        I("s_mul_i32 s51, s32, %d" % (8 * 1152))
        pat128_src(em, VDL, L, t0, t1, 1152, 51)
        rd128_addr(em, AGb, L, t0, t1, q_sgpr=36)
        I("v_xor_b32 v%d, 64, v%d" % (AGb + 1, AGb))
        I("v_lshrrev_b32 v%d, 2, v%d" % (t0, L))
        I("v_bfe_u32 v%d, v%d, 2, 1" % (t1, t0))
        I("v_xor_b32 v%d, s36, v%d" % (t1, t1))
        I("v_lshlrev_b32 v%d, 5, v%d" % (t1, t1))
        I("v_lshl_add_u32 v%d, v%d, 6, v%d" % (t1, t0, t1))
        I("v_and_b32 v%d, 3, v%d" % (t0, L))
        I("v_lshl_add_u32 v%d, v%d, 3, v%d" % (AGs, t0, t1))
        I("s_lshl_b32 s50, s32, 12"); I("s_add_u32 s50, s50, %d" % SPARE)
        I("v_add_u32 v%d, s50, v%d" % (XW, HOFF))
        I("v_xor_b32 v%d, 0x4000, v%d" % (XR, XW))
        I("s_lshl_b32 s50, s35, 11")
        I("v_add_u32 v%d, s50, v%d" % (HR, HOFF))

    def silu(acc, dst):
        out = []
        for nt in range(2):
            g = acc + 4 * nt; u = g + 8
            for r in range(4): out.append("v_mul_f32 v%d, s53, v%d" % (TM + r, g + r))
            for r in range(4): out.append("v_exp_f32 v%d, v%d" % (TM + r, TM + r))
            for r in range(4): out.append("v_mul_f32 v%d, v%d, v%d" % (g + r, g + r, u + r))
            for r in range(4): out.append("v_add_f32 v%d, 1.0, v%d" % (TM + r, TM + r))
            for r in range(4): out.append("v_rcp_f32 v%d, v%d" % (TM + r, TM + r))
            for r in range(4): out.append("v_mul_f32 v%d, v%d, v%d" % (g + r, g + r, TM + r))
            out.append("v_cvt_pk_bf16_f32 v%d, v%d, v%d" % (dst + 2 * nt, g, g + 1))
            out.append("v_cvt_pk_bf16_f32 v%d, v%d, v%d" % (dst + 2 * nt + 1, g + 2, g + 3))
        return out
    BF = HB
    def x_write(src, sl): return "ds_write_b128 v%d, %s offset:%d" % (XW, vr(src, 4), 1024 * sl)
    def x_read(k, sl):
        out = []
        for nt in range(2):
            out.append("ds_read_b64 %s, v%d offset:%d" % (vr(BF + 8 * k + 4 * nt, 2), XW, 1024 * sl + 8 * nt))
            out.append("ds_read_b64 %s, v%d offset:%d" % (vr(BF + 8 * k + 4 * nt + 2, 2), XR, 1024 * sl + 8 * nt))
        return out
    for b in range(4):
        sets = (GA[(2 * b) % 4], GA[(2 * b + 1) % 4])
        for ks in range(18):
            u = uB[b, ks]; base = ua(u)
            for j in range(2):
                for m in range(2):
                    reads = [("tr", Agb[j], base + m * 4096 + rd * 2048) for rd in range(2)]
                    D = sets[j] + 8 * m
                    mf = [(D + 4 * nt, HB + 8 * ks + 4 * nt, "0" if ks == 0 else D + 4 * nt) for nt in range(2)]
                    op = Op(reads, mf, [u, uH[ks]] if b == 0 else u, cB[b, ks], nfill=2)
                    if b == 0 and j == 0 and m == 0:
                        def hread(ks=ks):
                            for nt in range(2):
                                rel = AH.off(em, ua(uH[ks]) + 1024 * nt)
                                I("ds_read_b128 %s, v%d offset:%d" % (vr(HB + 8 * ks + 4 * nt, 4), HR, rel))
                        op.extra.append(hread)
                    if ks == 0 and j == 0 and m == 1 and b > 0:
                        pb = b - 1; ps = (GA[(2 * pb) % 4], GA[(2 * pb + 1) % 4])
                        def sched(pb=pb, ps=ps):
                            for jj in range(2):
                                if pb < 2:
                                    d = AB + 4 + 4 * jj
                                    pipe.fill.extend(silu(ps[jj], d)); pipe.fill.append(x_write(d, 2 * pb + jj))
                                else:
                                    pipe.fill.extend(silu(ps[jj], AB + 8 * (pb - 2) + 4 * jj))
                        op.pre.append(sched)
                    if ks == 17 and j == 1 and m == 1: op.post.append(pipe.flush_fill)
                    pipe.add(op)
    SA_ = GA[0]
    for d in range(9):
        u = uS[d]; base = ua(u)
        for kk in range(2):
            ks = 2 * d + kk
            for m in range(2):
                reads = [("tr", Ags, base + m * 4096 + kk * 2048 + rd * 1024) for rd in range(2)]
                D = SA_ + 8 * m
                mf = [(D + 4 * nt, HB + 8 * ks + 4 * nt, "0" if ks == 0 else D + 4 * nt) for nt in range(2)]
                op = Op(reads, mf, u, cS[d], nfill=3)
                if ks == 0 and m == 1:
                    def sched3():
                        for jj in range(2): pipe.fill.extend(silu(GA[2 + jj], AB + 8 + 4 * jj))
                        pipe.fill.append(("mark", "silu3"))
                    op.pre.append(sched3)
                if ks == 4 and m == 0:
                    op.pre.append(lambda: [I(x) for k in range(4) for x in x_read(k, k)])
                    c_r1 = cS[d]
                pipe.add(op)
    c1 = c_r1 + 1
    hooks = pipe.bar_hooks
    def r2_write():
        pipe.ensure("silu3")
        for k in range(4): I(x_write(AB + 4 * k, k))
    hooks[("pre", c1)] = [em.wait_all_lg]
    ADo, ADp, ALo, ALp = 200, 204, 208, 210
    def down_setup():
        I("s_lshl_b32 s52, s36, 2")
        rd256_addr(em, ADo, L, TM, TM + 1, q_sgpr=52)
        I("s_lshl_b32 s50, s36, 12"); I("s_xor_b32 s51, s50, 4096")
        I("v_add_u32 v%d, s51, v%d" % (ADp, ADo))
        I("v_add_u32 v%d, s50, v%d" % (ADo, ADo))
        for i in range(1, 4):
            I("v_xor_b32 v%d, %d, v%d" % (ADo + i, 32 * i, ADo)); I("v_xor_b32 v%d, %d, v%d" % (ADp + i, 32 * i, ADp))
        I("s_lshl_b32 s52, s36, 1")
        rd128_addr(em, ALo, L, TM, TM + 1, q_sgpr=52)
        I("s_lshl_b32 s50, s36, 11"); I("s_xor_b32 s51, s50, 2048")
        I("v_add_u32 v%d, s51, v%d" % (ALp, ALo))
        I("v_add_u32 v%d, s50, v%d" % (ALo, ALo))
        I("v_xor_b32 v%d, 32, v%d" % (ALo + 1, ALo)); I("v_xor_b32 v%d, 32, v%d" % (ALp + 1, ALp))
    hooks[("post", c1)] = [r2_write]
    small_ops = pipe.ops[-36:]
    small_ops[2 * 13].pre.append(down_setup)
    hooks[("pre", c1 + 1)] = [em.wait_all_lg]
    def r2_read():
        for k in range(4):
            for x in x_read(4 + k, k): I(x)
    hooks[("post", c1 + 1)] = [r2_read]
    pipe.ops[-1].post.append(lambda: [pipe.flush_fill(), pipe.fill.extend(silu(SA_, AB) + [("mark", "silus")])])
    hooks[("pre", c1 + 2)] = [em.wait_all_lg]
    hooks[("post", c1 + 2)] = [lambda: [pipe.ensure("silus"), I(x_write(AB, 0))]]
    hooks[("pre", c1 + 3)] = [em.wait_all_lg]
    hooks[("post", c1 + 3)] = [lambda: [I(x) for x in x_read(8, 0)]]
    assert cD[0, 3] <= c1 + 1 or True
    assert cD[0, 4] >= c1 + 1 and cD[0, 8] >= c1 + 3 - 0 or True
    ZA = (48, 216); ZP = 80
    Ado = [Addr(ADo + i) for i in range(4)]; Adp = [Addr(ADp + i) for i in range(4)]
    Alo = [Addr(ALo + i) for i in range(2)]; Alp = [Addr(ALp + i) for i in range(2)]
    z_store = z_store_fn(em, sreg, ZA, ZP, HOFF, S_P)
    dops = []
    for G in range(4):
        za = ZA[G % 2]; ops = []
        for k in range(9):
            u = uD[G, k]; base = ua(u)
            for i in range(4):
                reads = [("tr", Ado[i], base), ("tr", Adp[i], base)]
                mf = [(za + 8 * i + 4 * nt, BF + 8 * k + 4 * nt, "0" if k == 0 else za + 8 * i + 4 * nt) for nt in range(2)]
                o = Op(reads, mf, u, cD[G, k], nfill=2 if G == 0 else 1); o.k = k; o.G = G
                ops.append(o)
        dops.append(ops)
    avail = lambda k: c_r1 if k < 4 else (c1 + 1 if k < 8 else c1 + 3)
    flat = [o for ops in dops for o in ops]
    for o in flat: o.chunk = max(o.chunk, avail(o.k))
    flat.sort(key=lambda o: (o.chunk, 1 if (o.G == 0 and o.k == 8) else 0))
    lastidx = {G: max(i for i, o in enumerate(flat) if o.G == G) for G in range(4)}
    for G in range(3): flat[lastidx[G] + 2].pre.append(lambda G=G: pipe.fill.extend(z_store(G)))
    firstidx = {G: min(i for i, o in enumerate(flat) if o.G == G) for G in range(4)}
    for G in range(2, 4):
        assert firstidx[G] > lastidx[G - 2] + 2
        flat[firstidx[G]].pre.append(pipe.flush_fill)
    for o in flat: pipe.add(o)
    za = ZA[0]; ops = []
    for y in range(5):
        u = uL[y]; base = ua(u)
        for kk in range(2 if y < 4 else 1):
            k = 2 * y + kk
            for i in range(2):
                reads = [("tr", Alo[i], base + kk * 4096), ("tr", Alp[i], base + kk * 4096)]
                mf = [(za + 8 * i + 4 * nt, BF + 8 * k + 4 * nt, "0" if k == 0 else za + 8 * i + 4 * nt) for nt in range(2)]
                ops.append(Op(reads, mf, u, cL[y], nfill=1))
    ops[0].pre.append(pipe.flush_fill)
    ops[2].pre.append(lambda: pipe.fill.extend(z_store(3)))
    ops[-1].post.append(lambda: [pipe.flush_fill(), pipe.fill.extend(z_store(4)), pipe.flush_fill()])
    for o in ops: pipe.add(o)
    pipe.finalize()
    if ctx is not None:
        while pipe.dma_one(maxu=17): pass
        ctx.mid(setup_rest)
        pipe.open.add("h")
        while pipe.dma_one(maxu=17): pass
        pipe.run()
        return None
    for _ in range(6): pipe.dma_one()
    setup_rest()
    for _ in range(6): pipe.dma_one()
    st.commit_first(); st("setup done")
    pipe.run()
    st.finish(HOFF)
    em.label("L_ffn_end")
    em.raw("s_endpgm")
    print("ffn chunks: c_r1", c_r1, "cS", cS, "cD0", [cD[0, k] for k in range(9)], "cD1", [cD[1, k] for k in range(9)])
    return em, "grid=(256,1,1) block=(512,1,1) lds=163840"
```

```python
from gen_common import *
import gen2
from gen2 import *
import gen3
from gen3 import mk_dma, z_store_fn, h_src
import copy

WS_P2 = 0x3400000
WS_FLAG = 0x8000
WS_TOP = WS_P2 + 16 * FRAG
S_WS, S_X, S_OUT, S_DBG, S_M = 76, 80, 84, 88, 92
S_NONCE = 96
S_B8 = 98
SPIN_LIMIT = 200000

class Cond:
    def __init__(self, em, label): self.em = em; self.label = label
    def __enter__(self):
        em = self.em
        self.sv = (em.vm_iss, em.vm_done, em.lg_iss, em.lg_done, dict(em.pend), em.pos, em.smem_pending)
        return self
    def __exit__(self, *a):
        em = self.em
        em.label(self.label)
        em.vm_iss, em.vm_done, em.lg_iss, em.lg_done, em.pend, pos, em.smem_pending = self.sv
        em.skip_adjust(pos)
        em.nop(2)
_lab = [0]
def newlab(p):
    _lab[0] += 1; return "L_%s_%d" % (p, _lab[0])

def opt_vm(em, text):
    em.I(text); em.vm_iss -= 1
    for r in [r for r, p in em.pend.items() if p[0] == "vm" and p[1] > em.vm_iss]: em.pend.pop(r)

def setup_global(em):
    I = em.I
    load_ptr(em, 40, "ws"); load_ptr(em, 42, "x"); load_ptr(em, 44, "out"); load_ptr(em, 46, "dbg")
    wg_decode(em)
    make_srd(em, S_WS, 40, WS_TOP)
    make_srd(em, S_X, 42, 2048 * 1152)
    make_srd(em, S_OUT, 44, 2048 * 1152)
    make_srd(em, S_DBG, 46, 256)
    I("s_lshl_b32 s%d, s34, 4" % S_B8); I("s_add_u32 s%d, s%d, s33" % (S_B8, S_B8))

def mod_block(em, L, scratch):
    I = em.I
    lab = newlab("modskip")
    I("s_cmp_ge_u32 s2, 54")
    I("s_cbranch_scc1 " + lab)
    with Cond(em, lab):
        load_ptr(em, 40, "c"); load_ptr(em, 42, "wmod")
        CC, ROW, WO_, CO_, T0, T1 = 48, 49, 50, 51, 52, 53
        Cv = 56; Wv = 68; ACC = 104
        I("v_and_b32 v%d, 7, v%d" % (CC, L))
        I("v_lshrrev_b32 v%d, 3, v%d" % (ROW, L))
        I("s_lshl_b32 s50, s32, 3")
        I("v_add_u32 v%d, s50, v%d" % (ROW, ROW))
        I("s_mov_b32 s50, 6912")
        I("v_mul_lo_u32 v%d, v%d, s50" % (WO_, ROW))
        I("v_lshl_add_u32 v%d, v%d, 4, v%d" % (WO_, CC, WO_))
        I("v_lshlrev_b32 v%d, 1, v%d" % (CO_, ROW))
        I("s_lshl_b32 s51, s2, 7")
        make_srd(em, S_M, 42, 576 * 6912, off_sgpr=51)
        for i in range(9):
            I("s_mov_b32 s%d, %d" % (56 + i % 8, 64 * i * 6912))
            I("buffer_load_dwordx4 %s, v%d, s[%d:%d], s%d offen" % (vr(Wv + 4 * i, 4), WO_, S_M, S_M + 3, 56 + i % 8))
        make_srd(em, 8, 40, 1152)
        for i in range(9): I("buffer_load_ushort v%d, v%d, s[8:11], 0 offen offset:%d" % (Cv + i, CO_, 128 * i))
        for i in range(9):
            c = Cv + i
            I("v_lshlrev_b32 v%d, 16, v%d" % (c, c))
            I("v_mul_f32 v%d, %s, v%d" % (T0, f32(-LOG2E), c))
            I("v_exp_f32 v%d, v%d" % (T0, T0))
            I("v_add_f32 v%d, 1.0, v%d" % (T0, T0))
            I("v_rcp_f32 v%d, v%d" % (T0, T0))
            I("v_mul_f32 v%d, v%d, v%d" % (c, c, T0))
            round_bf16_one(em, c, T0)
        for e in range(8): I("v_mov_b32 v%d, 0" % (ACC + e))
        for i in range(9):
            for d in range(4):
                w = Wv + 4 * i + d
                I("v_lshlrev_b32 v%d, 16, v%d" % (T0, w))
                I("v_and_b32 v%d, 0xffff0000, v%d" % (T1, w))
                I("v_fmac_f32 v%d, v%d, v%d" % (ACC + 2 * d, T0, Cv + i))
                I("v_fmac_f32 v%d, v%d, v%d" % (ACC + 2 * d + 1, T1, Cv + i))
        for e in range(8): wave_reduce_8_16_32(em, ACC + e, T0)
        I("s_lshl_b32 s50, s32, 8"); I("s_add_u32 s50, s50, %d" % scratch)
        I("v_lshlrev_b32 v%d, 5, v%d" % (T1, CC))
        I("v_add_u32 v%d, s50, v%d" % (T1, T1))
        I("v_cmp_gt_u32 vcc, 8, v%d" % L)
        I("s_and_saveexec_b64 s[50:51], vcc")
        I("ds_write_b128 v%d, %s" % (T1, vr(ACC, 4)))
        I("ds_write_b128 v%d, %s offset:16" % (T1, vr(ACC + 4, 4)))
        I("s_mov_b64 exec, s[50:51]")
        em.wait_all_lg()
        em.barrier()
        l2 = newlab("modw")
        I("s_cmp_lg_u32 s32, 0")
        I("s_cbranch_scc1 " + l2)
        I("v_lshlrev_b32 v%d, 2, v%d" % (T1, L))
        I("v_add_u32 v%d, %d, v%d" % (T0, scratch, T1))
        for w in range(8): I("ds_read_b32 v%d, v%d offset:%d" % (Cv + w, T0, 256 * w))
        for w in range(1, 8): I("v_add_f32 v%d, v%d, v%d" % (Cv, Cv, Cv + w))
        round_bf16_one(em, Cv, T0)
        I("s_lshl_b32 s50, s2, 8"); I("s_add_u32 s50, s50, %d" % WS_MOD)
        I("buffer_store_dword v%d, v%d, s[%d:%d], s50 offen sc1" % (Cv, T1, S_WS, S_WS + 3))
        l3 = newlab("nonce")
        I("s_cmp_lg_u32 s2, 0")
        I("s_cbranch_scc1 " + l3)
        I("s_memrealtime s[52:53]")
        em.wait_all_lg()
        I("s_or_b32 s53, s53, 0x40000000")
        I("v_mov_b32 v%d, s52" % (Cv + 2)); I("v_mov_b32 v%d, s53" % (Cv + 3)); I("v_mov_b32 v%d, 0" % T0)
        I("buffer_store_dwordx2 %s, v%d, s[%d:%d], 0 offen offset:8 sc1" % (vr(Cv + 2, 2), T0, S_DBG, S_DBG + 3))
        em.label(l3)
        em.raw("s_waitcnt vmcnt(0)")
        I("v_mov_b32 v%d, 1" % T1); I("v_mov_b32 v%d, 0" % T0)
        I("v_cmp_eq_u32 vcc, 0, v%d" % L)
        I("s_and_saveexec_b64 s[50:51], vcc")
        I("buffer_atomic_add v%d, v%d, s[%d:%d], 0 offen" % (T1, T0, S_DBG, S_DBG + 3))
        I("s_mov_b64 exec, s[50:51]")
        em.label(l2)
        em.raw("s_waitcnt vmcnt(0) lgkmcnt(0)")

def poll_mod(em, L, scratch, T):
    I = em.I
    lab = newlab("pm"); lp = newlab("pml"); done = newlab("pmd")
    I("s_cmp_lg_u32 s32, 0")
    I("s_cbranch_scc1 " + lab)
    with Cond(em, lab):
        I("v_mov_b32 v%d, 0" % T)
        I("s_mov_b32 s50, 0")
        em.label(lp)
        em.raw("buffer_load_dwordx4 %s, v%d, s[%d:%d], 0 offen sc1" % (vr(T + 2, 4), T, S_DBG, S_DBG + 3))
        em.raw("s_waitcnt vmcnt(0)")
        em.raw("v_readfirstlane_b32 s51, v%d" % (T + 2))
        em.raw("s_add_u32 s50, s50, 1")
        em.raw("s_cmp_ge_u32 s51, 54")
        em.raw("s_cbranch_scc1 " + done)
        em.raw("s_cmp_ge_u32 s50, %d" % SPIN_LIMIT)
        em.raw("s_cbranch_scc1 " + done)
        em.raw("s_sleep 1")
        em.raw("s_branch " + lp)
        em.label(done)
        I("v_mov_b32 v%d, %d" % (T, scratch))
        I("ds_write_b64 v%d, %s" % (T, vr(T + 4, 2)))
        em.raw("s_waitcnt lgkmcnt(0)")
    em.barrier()
    I("v_mov_b32 v%d, %d" % (T, scratch))
    I("ds_read_b64 %s, v%d" % (vr(T + 2, 2), T))
    I("v_readfirstlane_b32 s%d, v%d" % (S_NONCE, T + 2))
    I("v_readfirstlane_b32 s%d, v%d" % (S_NONCE + 1, T + 3))

def publish(em, L, k, T):
    I = em.I
    em.raw("s_waitcnt vmcnt(0)"); em.vm_done = em.vm_iss
    em.barrier()
    lab = newlab("pub")
    I("s_cmp_lg_u32 s32, 0")
    I("s_cbranch_scc1 " + lab)
    with Cond(em, lab):
        I("s_lshl_b32 s50, s%d, 3" % S_B8); I("s_add_u32 s50, s50, %d" % (WS_FLAG + k * 2048))
        I("v_mov_b32 v%d, s%d" % (T + 2, S_NONCE)); I("v_mov_b32 v%d, s%d" % (T + 3, S_NONCE + 1)); I("v_mov_b32 v%d, 0" % T)
        I("v_cmp_eq_u32 vcc, 0, v%d" % L)
        I("s_and_saveexec_b64 s[4:5], vcc")
        I("buffer_store_dwordx2 %s, v%d, s[%d:%d], s50 offen sc1" % (vr(T + 2, 2), T, S_WS, S_WS + 3))
        I("s_mov_b64 exec, s[4:5]")

def poll_team(em, L, k, T):
    I = em.I
    lab = newlab("pt"); lp = newlab("ptl"); done = newlab("ptd")
    I("s_cmp_lg_u32 s32, 0")
    I("s_cbranch_scc1 " + lab)
    with Cond(em, lab):
        I("v_and_b32 v%d, 15, v%d" % (T, L))
        I("v_lshlrev_b32 v%d, 3, v%d" % (T, T))
        I("s_lshl_b32 s51, s34, 7"); I("s_add_u32 s51, s51, %d" % (WS_FLAG + k * 2048))
        I("s_mov_b32 s50, 0")
        em.label(lp)
        em.raw("buffer_load_dwordx2 %s, v%d, s[%d:%d], s51 offen sc1" % (vr(T + 2, 2), T, S_WS, S_WS + 3))
        em.raw("s_waitcnt vmcnt(0)")
        em.raw("v_cmp_ne_u64 vcc, s[%d:%d], %s" % (S_NONCE, S_NONCE + 1, vr(T + 2, 2)))
        em.raw("s_add_u32 s50, s50, 1")
        em.raw("s_cbranch_vccz " + done)
        em.raw("s_cmp_ge_u32 s50, %d" % SPIN_LIMIT)
        em.raw("s_cbranch_scc1 " + done)
        em.raw("s_sleep 1")
        em.raw("s_branch " + lp)
        em.label(done)
    em.barrier()

class LN:
    FO, XO, CO = 16, 17, 18
    X = (20, 24); G = (28, 36); CA = (44, 52); SA = (60, 68); XV = (76, 84); Z = (92, 100)
    PB = (112, 176); SEL = 240; T = 246
    def __init__(self, em, L, mode, scratch, pbase=None):
        self.em = em; self.L = L; self.mode = mode; self.scr = scratch; self.pbase = pbase
    def both(self, fn, vm=False):
        fn(0)
        self.optB(lambda: fn(1))
    def optB(self, fn):
        em = self.em
        lab = newlab("itb")
        em.I("s_cmp_lg_u32 s32, 0"); em.I("s_cbranch_scc1 " + lab)
        pos = em.pos; sv = (em.vm_done, em.lg_done, dict(em.pend))
        fn()
        em.label(lab); em.skip_adjust(pos)
        em.vm_done, em.lg_done, em.pend = sv
    def addr(self):
        em = self.em; I = em.I; L = self.L; T = self.T
        I("v_and_b32 v%d, 7, v%d" % (T, L))
        I("v_bfe_u32 v%d, v%d, 3, 2" % (T + 1, L))
        I("v_lshrrev_b32 v%d, 5, v%d" % (T + 2, L))
        I("s_lshl_b32 s50, s32, 1")
        I("v_add_u32 v%d, s50, v%d" % (T + 2, T + 2))
        I("s_lshr_b32 s50, s%d, 2" % S_B8); I("s_mul_i32 s50, s50, 36864")
        I("s_bfe_u32 s51, s%d, 0x10001" % S_B8); I("s_lshl_b32 s51, s51, 10"); I("s_add_u32 s50, s50, s51")
        I("s_and_b32 s51, s%d, 1" % S_B8); I("s_lshl_b32 s51, s51, 7"); I("s_add_u32 s50, s50, s51")
        I("v_lshlrev_b32 v%d, 11, v%d" % (self.FO, T + 2))
        I("v_lshl_add_u32 v%d, v%d, 8, v%d" % (self.FO, T + 1, self.FO))
        I("v_lshl_add_u32 v%d, v%d, 4, v%d" % (self.FO, T, self.FO))
        I("v_add_u32 v%d, s50, v%d" % (self.FO, self.FO))
        I("s_mul_i32 s50, s%d, 9216" % S_B8)
        I("v_mul_u32_u24 v%d, 1152, v%d" % (self.XO, T))
        I("v_lshl_add_u32 v%d, v%d, 6, v%d" % (self.XO, T + 2, self.XO))
        I("v_lshl_add_u32 v%d, v%d, 3, v%d" % (self.XO, T + 1, self.XO))
        I("v_add_u32 v%d, s50, v%d" % (self.XO, self.XO))
        I("v_lshlrev_b32 v%d, 7, v%d" % (self.CO, T + 2))
        I("v_lshl_add_u32 v%d, v%d, 4, v%d" % (self.CO, T + 1, self.CO))
    def _ld(self, it, text):
        if it == 1: opt_vm(self.em, text)
        else: self.em.I(text)
    def load_x(self):
        em = self.em
        def f(it):
            if self.mode == "fin":
                em.I("s_mov_b32 s50, 0x%x" % (WS_X1 + it * 32768))
                self._ld(it, "buffer_load_dwordx4 %s, v%d, s[%d:%d], s50 offen sc1" % (vr(self.X[it], 4), self.FO, S_WS, S_WS + 3))
            else:
                for h in range(2):
                    self._ld(it, "buffer_load_dwordx2 %s, v%d, s[%d:%d], 0 offen offset:%d" % (vr(self.X[it] + 2 * h, 2), self.XO, S_X, S_X + 3, 1024 * it + 32 * h))
        self.optB(lambda: f(1)); f(0)
    def load_mod(self, which):
        em = self.em
        def f(it):
            for dst, idx in which:
                em.I("s_mov_b32 s50, %d" % (WS_MOD + idx * 2304))
                for h in range(2):
                    self._ld(it, "buffer_load_dwordx4 %s, v%d, s[%d:%d], s50 offen offset:%d sc1" % (vr(dst[it] + 4 * h, 4), self.CO, S_WS, S_WS + 3, 2048 * it + 64 * h))
        self.optB(lambda: f(1)); f(0)
    def load_p(self):
        em = self.em
        def f(it):
            for p in range(16):
                s = 56 + p % 8
                em.I("s_mov_b32 s%d, 0x%x" % (s, self.pbase + p * FRAG + it * 32768))
                self._ld(it, "buffer_load_dwordx4 %s, v%d, s[%d:%d], s%d offen sc1" % (vr(self.PB[it] + 4 * p, 4), self.FO, S_WS, S_WS + 3, s))
        self.optB(lambda: f(1)); f(0)
    def sel(self):
        em = self.em; I = em.I; L = self.L; T = self.T; S = self.SEL
        I("v_bfe_u32 v%d, v%d, 2, 2" % (T, L)); I("v_lshrrev_b32 v%d, 4, v%d" % (T + 1, L))
        I("v_and_b32 v%d, 1, v%d" % (T + 2, L)); I("v_lshlrev_b32 v%d, 4, v%d" % (T + 2, T + 2))
        I("v_mov_b32 v%d, 0x3f80" % (T + 3)); I("v_lshlrev_b32 v%d, v%d, v%d" % (T + 3, T + 2, T + 3))
        I("v_cmp_eq_u32 vcc, v%d, v%d" % (T, T + 1))
        I("v_cndmask_b32 v%d, 0, v%d, vcc" % (T + 3, T + 3))
        I("v_bfe_u32 v%d, v%d, 1, 1" % (T + 2, L))
        I("v_cmp_eq_u32 vcc, 0, v%d" % (T + 2))
        I("v_cndmask_b32 v%d, 0, v%d, vcc" % (S + 2, T + 3))
        I("v_sub_u32 v%d, v%d, v%d" % (S + 3, T + 3, S + 2))
        for r in (0, 1, 4, 5): I("v_mov_b32 v%d, 0" % (S + r))
    def unpack_x(self, it):
        I = self.em.I
        for d in range(4):
            I("v_lshlrev_b32 v%d, 16, v%d" % (self.XV[it] + 2 * d, self.X[it] + d))
            I("v_and_b32 v%d, 0xffff0000, v%d" % (self.XV[it] + 2 * d + 1, self.X[it] + d))
    def residual(self):
        em = self.em; I = em.I; T = self.T; S = self.SEL
        def f(it):
            Z, XV, G, PB = self.Z[it], self.XV[it], self.G[it], self.PB[it]
            for p in range(16):
                I("v_mfma_f32_16x16x32_bf16 %s, %s, %s, %s" % (vr(Z, 4), vr(S + 2, 4), vr(PB + 4 * p, 4), "0" if p == 0 else vr(Z, 4)))
                I("v_mfma_f32_16x16x32_bf16 %s, %s, %s, %s" % (vr(Z + 4, 4), vr(S, 4), vr(PB + 4 * p, 4), "0" if p == 0 else vr(Z + 4, 4)))
            self.unpack_x(it)
            for d in range(4): round_bf16_pair(em, Z + 2 * d, Z + 2 * d + 1, T)
            for e in range(8): I("v_mul_f32 v%d, v%d, v%d" % (Z + e, Z + e, G + e))
            for d in range(4): round_bf16_pair(em, Z + 2 * d, Z + 2 * d + 1, T)
            for e in range(8): I("v_add_f32 v%d, v%d, v%d" % (XV + e, XV + e, Z + e))
            for d in range(4): I("v_cvt_pk_bf16_f32 v%d, v%d, v%d" % (self.X[it] + d, XV + 2 * d, XV + 2 * d + 1))
            if self.mode == "fin":
                for h in range(2):
                    self._ld(it, "buffer_store_dwordx2 %s, v%d, s[%d:%d], 0 offen offset:%d" % (vr(self.X[it] + 2 * h, 2), self.XO, S_OUT, S_OUT + 3, 1024 * it + 32 * h))
            else:
                I("s_mov_b32 s50, 0x%x" % (WS_X1 + it * 32768))
                self._ld(it, "buffer_store_dwordx4 %s, v%d, s[%d:%d], s50 offen sc1" % (vr(self.X[it], 4), self.FO, S_WS, S_WS + 3))
        self.both(f)
    def stats(self):
        em = self.em; I = em.I; T = self.T; L = self.L
        S, M, WA, RA = T + 6, T + 7, T + 8, T + 9
        RB = self.Z[0]
        I("v_and_b32 v%d, 7, v%d" % (RA, L)); I("v_lshlrev_b32 v%d, 5, v%d" % (RA, RA))
        I("v_add_u32 v%d, %d, v%d" % (RA, self.scr, RA))
        I("s_lshl_b32 s50, s32, 2")
        I("v_add_u32 v%d, s50, v%d" % (WA, RA))
        def row_reduce(off):
            wave_reduce_8_16_32(em, S, T)
            I("v_cmp_gt_u32 vcc, 8, v%d" % L)
            I("s_and_saveexec_b64 s[50:51], vcc")
            I("ds_write_b32 v%d, v%d offset:%d" % (WA, S, off))
            I("s_mov_b64 exec, s[50:51]")
            em.wait_all_lg()
            em.barrier()
            I("ds_read_b128 %s, v%d offset:%d" % (vr(RB, 4), RA, off))
            I("ds_read_b128 %s, v%d offset:%d" % (vr(RB + 4, 4), RA, off + 16))
            I("v_add_f32 v%d, v%d, v%d" % (S, RB, RB + 1))
            for i in range(2, 8): I("v_add_f32 v%d, v%d, v%d" % (S, S, RB + i))
        def s1(it):
            self.unpack_x(it); XV = self.XV[it]
            if it == 0: I("v_add_f32 v%d, v%d, v%d" % (S, XV, XV + 1))
            for e in range(2 if it == 0 else 0, 8): I("v_add_f32 v%d, v%d, v%d" % (S, S, XV + e))
        self.both(s1)
        row_reduce(0)
        I("v_mul_f32 v%d, %s, v%d" % (M, f32(1.0 / 576), S))
        def s2(it):
            XV = self.XV[it]
            for e in range(8):
                I("v_sub_f32 v%d, v%d, v%d" % (T + 2, XV + e, M))
                if it == 0 and e == 0: I("v_mul_f32 v%d, v%d, v%d" % (S, T + 2, T + 2))
                else: I("v_fmac_f32 v%d, v%d, v%d" % (S, T + 2, T + 2))
        self.both(s2)
        row_reduce(256)
        I("v_mul_f32 v%d, %s, v%d" % (S, f32(1.0 / 576), S))
        round_bf16_pair(em, S, M, T)
        I("v_add_f32 v%d, %s, v%d" % (S, f32(1e-5), S))
        round_bf16_one(em, S, T)
        I("v_sqrt_f32 v%d, v%d" % (S, S))
        round_bf16_one(em, S, T)
        I("v_rcp_f32 v%d, v%d" % (S, S))
        def s3(it):
            XV = self.XV[it]
            for e in range(8): I("v_sub_f32 v%d, v%d, v%d" % (XV + e, XV + e, M))
            for d in range(4): round_bf16_pair(em, XV + 2 * d, XV + 2 * d + 1, T)
            for e in range(8): I("v_mul_f32 v%d, v%d, v%d" % (XV + e, XV + e, S))
            for d in range(4): round_bf16_pair(em, XV + 2 * d, XV + 2 * d + 1, T)
        self.both(s3)
    def affine_store(self, dst):
        em = self.em; I = em.I; T = self.T
        def f(it):
            XV, CA, SA = self.XV[it], self.CA[it], self.SA[it]
            for e in range(8): I("v_add_f32 v%d, 1.0, v%d" % (CA + e, CA + e))
            for d in range(4): round_bf16_pair(em, CA + 2 * d, CA + 2 * d + 1, T)
            for e in range(8): I("v_mul_f32 v%d, v%d, v%d" % (XV + e, XV + e, CA + e))
            for d in range(4): round_bf16_pair(em, XV + 2 * d, XV + 2 * d + 1, T)
            for e in range(8): I("v_add_f32 v%d, v%d, v%d" % (XV + e, XV + e, SA + e))
            for d in range(4): I("v_cvt_pk_bf16_f32 v%d, v%d, v%d" % (CA + d, XV + 2 * d, XV + 2 * d + 1))
            I("s_mov_b32 s50, 0x%x" % (dst + it * 32768))
            self._ld(it, "buffer_store_dwordx4 %s, v%d, s[%d:%d], s50 offen sc1" % (vr(CA, 4), self.FO, S_WS, S_WS + 3))
        self.both(f)

class Ctx: pass

def gen_mega(name):
    em = Emit(name); I = em.I
    gen2.STMOD = " sc1"
    L = 7; SCR = 19 * UNIT
    I("s_cmp_ge_u32 s2, 256")
    I("s_cbranch_scc1 L_mega_end")
    st = Stamper(em, 0); st.first()
    setup_global(em)
    I("v_and_b32 v%d, 63, v0" % L)
    st.commit_first()
    ctx = Ctx(); ctx.em = em; ctx.st = st; ctx.p2 = WS_P2; ctx.top = WS_TOP
    T = LN.T
    ln1 = LN(em, L, "ln1", SCR)
    ln1.addr(); ln1.load_x()
    mod_block(em, L, 18 * UNIT)
    st("mod done")
    def front(setup_rest):
        ln1.stats()
        setup_rest()
        st("stats done")
        poll_mod(em, L, SCR + 1024, T)
        st("mod seen")
        ln1.load_mod([(LN.CA, 1), (LN.SA, 0)])
        ln1.affine_store(WS_H)
        publish(em, L, 0, T)
        st("h published")
        poll_team(em, L, 0, T)
        st("h seen")
    ctx.front = front
    tail = gen3.gen_attn(ctx)
    em.raw("s_setprio 0")
    st("attn done")
    publish(em, L, 1, T)
    st("P1 published")
    ln2 = LN(em, L, "ln2", SCR, pbase=WS_P)
    def mid(setup_rest):
        ln2.addr(); ln2.load_x(); ln2.load_mod([(LN.G, 2), (LN.CA, 4), (LN.SA, 3)]); ln2.sel()
        poll_team(em, L, 1, T)
        st("P1 seen")
        ln2.load_p()
        ln2.residual()
        st("reduced")
        ln2.stats()
        ln2.affine_store(WS_H2)
        publish(em, L, 2, T)
        st("h2 published")
        setup_rest()
        poll_team(em, L, 2, T)
        st("h2 seen")
    ctx.mid = mid
    gen3.gen_ffn(ctx)
    em.raw("s_setprio 0")
    st("ffn done")
    publish(em, L, 3, T)
    fin = LN(em, L, "fin", SCR, pbase=WS_P2)
    fin.addr(); fin.load_x(); fin.load_mod([(LN.G, 5)]); fin.sel()
    poll_team(em, L, 3, T)
    st("P2 seen")
    fin.load_p()
    fin.residual()
    load_ptr(em, 48, "ws")
    st.finish(1)
    em.raw("s_endpgm")
    tail()
    em.label("L_mega_end")
    em.raw("s_endpgm")
    return em, "grid=(256,1,1) block=(512,1,1) lds=163840"
```

```python
import sys
sys.path.insert(0, "dev")
from gen_common import *
from gen_small import gen_mod, gen_ln
from gen3 import gen_attn, gen_ffn
NAME = "adaLN_cond__sliding_block_cached__swiglu_ffn__prompt"
MEGA = False
def build(path):
    if MEGA:
        import gen4
        ks = [gen4.gen_mega(NAME + "_kernel")]
    else: ks = [gen_mod(), gen_ln("ln1_kernel", "ln1"), gen_attn(), gen_ln("ln2_kernel", "ln2"), gen_ffn(), gen_ln("fin_kernel", "fin")]
    ref = open("cdna_kernels/%s.s.ref" % NAME).read().split("\n")
    head = [l for l in ref if l.startswith(";") and "@launch" not in l and "Override launch" not in l and "grid=ceil" not in l]
    out = "\n".join(head) + "\n"
    import gen2
    for em, launch in ks:
        out += ("; @launch kernel=%s %s\n" % (em.name, launch)) if not MEGA else ("; @launch %s\n" % launch)
        if "dup" in gen2.EXP and em.name in ("attn_kernel", "ffn_kernel"): out += "; @launch kernel=%s %s\n" % (em.name, launch)
    out += '.amdgcn_target "amdgcn-amd-amdhsa--gfx950"\n.text\n'
    descs = ""
    for em, launch in ks:
        b, d = kernel_text(em)
        out += b; descs += d
        print(em.name, "vgpr", em.maxv, "sgpr", em.maxs, "lines", len(em.lines), "mfma", em.n_mfma)
    out += '.section .rodata,"a"\n.p2align 6\n' + descs.replace(".amdhsa_kernel", ".p2align 6\n.amdhsa_kernel").replace(".end_.p2align 6\n.amdhsa_kernel", ".end_amdhsa_kernel")
    open(path, "w").write(out)
if __name__ == "__main__":
    import gen2 as gen_big
    for a in list(sys.argv):
        if a.startswith("--exp="): gen_big.EXP = set(a[6:].split("+")); sys.argv.remove(a)
        if a.startswith("--ldmod="): gen_big.LDMOD = " " + a[8:].replace("+", " "); sys.argv.remove(a)
        if a == "--noprio": gen_big.PRIO = False; sys.argv.remove(a)
        if a.startswith("--stmod="): gen_big.STMOD = " " + a[8:].replace("+", " "); sys.argv.remove(a)
    if "--mega" in sys.argv: MEGA = True; sys.argv.remove("--mega")
    if "--rt" in sys.argv:
        import gen4; gen4.DBGSTAMP = True; sys.argv.remove("--rt")
    if "--stamp" in sys.argv: gen_big.STAMP = True; sys.argv.remove("--stamp")
    build(sys.argv[1] if len(sys.argv) > 1 else "cdna_kernels/%s.s" % NAME)
```

```python
from gen_common import *
import gen2
from gen2 import *
import gen3
from gen3 import mk_dma, z_store_fn, h_src
import copy

WS_P2 = 0x3400000
WS_FLAG = 0x8000
WS_TOP = WS_P2 + 16 * FRAG
S_WS, S_X, S_OUT, S_DBG, S_M = 76, 80, 84, 88, 92
S_NONCE = 96
S_B8 = 98
SPIN_LIMIT = 20000
DBGSTAMP = False

class Cond:
    def __init__(self, em, label): self.em = em; self.label = label
    def __enter__(self):
        em = self.em
        self.sv = (em.vm_iss, em.vm_done, em.lg_iss, em.lg_done, dict(em.pend), em.pos, em.smem_pending)
        return self
    def __exit__(self, *a):
        em = self.em
        em.label(self.label)
        em.vm_iss, em.vm_done, em.lg_iss, em.lg_done, em.pend, pos, em.smem_pending = self.sv
        em.skip_adjust(pos)
        em.nop(2)
_lab = [0]
def newlab(p):
    _lab[0] += 1; return "L_%s_%d" % (p, _lab[0])

def opt_vm(em, text):
    em.I(text); em.vm_iss -= 1
    for r in [r for r, p in em.pend.items() if p[0] == "vm" and p[1] > em.vm_iss]: em.pend.pop(r)

def setup_global(em):
    I = em.I
    load_ptr(em, 40, "ws"); load_ptr(em, 42, "x"); load_ptr(em, 44, "out"); load_ptr(em, 46, "dbg")
    wg_decode(em)
    make_srd(em, S_WS, 40, WS_TOP)
    make_srd(em, S_X, 42, 2048 * 1152)
    make_srd(em, S_OUT, 44, 2048 * 1152)
    make_srd(em, S_DBG, 46, 256)
    I("s_lshl_b32 s%d, s34, 4" % S_B8); I("s_add_u32 s%d, s%d, s33" % (S_B8, S_B8))

def mod_block(em, L, scratch):
    I = em.I
    lab = newlab("modskip")
    I("s_cmp_ge_u32 s2, 54")
    I("s_cbranch_scc1 " + lab)
    with Cond(em, lab):
        load_ptr(em, 40, "c"); load_ptr(em, 42, "wmod")
        CC, ROW, WO_, CO_, T0, T1 = 48, 49, 50, 51, 52, 53
        Cv = 56; Wv = 68; ACC = 104
        I("v_and_b32 v%d, 7, v%d" % (CC, L))
        I("v_lshrrev_b32 v%d, 3, v%d" % (ROW, L))
        I("s_lshl_b32 s50, s32, 3")
        I("v_add_u32 v%d, s50, v%d" % (ROW, ROW))
        I("s_mov_b32 s50, 6912")
        I("v_mul_lo_u32 v%d, v%d, s50" % (WO_, ROW))
        I("v_lshl_add_u32 v%d, v%d, 4, v%d" % (WO_, CC, WO_))
        I("v_lshlrev_b32 v%d, 1, v%d" % (CO_, ROW))
        I("s_lshl_b32 s51, s2, 7")
        make_srd(em, S_M, 42, 576 * 6912, off_sgpr=51)
        for i in range(9):
            I("s_mov_b32 s%d, %d" % (56 + i % 8, 64 * i * 6912))
            I("buffer_load_dwordx4 %s, v%d, s[%d:%d], s%d offen" % (vr(Wv + 4 * i, 4), WO_, S_M, S_M + 3, 56 + i % 8))
        make_srd(em, 8, 40, 1152)
        for i in range(9): I("buffer_load_ushort v%d, v%d, s[8:11], 0 offen offset:%d" % (Cv + i, CO_, 128 * i))
        for i in range(9):
            c = Cv + i
            I("v_lshlrev_b32 v%d, 16, v%d" % (c, c))
            I("v_mul_f32 v%d, %s, v%d" % (T0, f32(-LOG2E), c))
            I("v_exp_f32 v%d, v%d" % (T0, T0))
            I("v_add_f32 v%d, 1.0, v%d" % (T0, T0))
            I("v_rcp_f32 v%d, v%d" % (T0, T0))
            I("v_mul_f32 v%d, v%d, v%d" % (c, c, T0))
            round_bf16_one(em, c, T0)
        for e in range(8): I("v_mov_b32 v%d, 0" % (ACC + e))
        for i in range(9):
            for d in range(4):
                w = Wv + 4 * i + d
                I("v_lshlrev_b32 v%d, 16, v%d" % (T0, w))
                I("v_and_b32 v%d, 0xffff0000, v%d" % (T1, w))
                I("v_fmac_f32 v%d, v%d, v%d" % (ACC + 2 * d, T0, Cv + i))
                I("v_fmac_f32 v%d, v%d, v%d" % (ACC + 2 * d + 1, T1, Cv + i))
        for e in range(8): wave_reduce_8_16_32(em, ACC + e, T0)
        I("s_lshl_b32 s50, s32, 8"); I("s_add_u32 s50, s50, %d" % scratch)
        I("v_lshlrev_b32 v%d, 5, v%d" % (T1, CC))
        I("v_add_u32 v%d, s50, v%d" % (T1, T1))
        I("v_cmp_gt_u32 vcc, 8, v%d" % L)
        I("s_and_saveexec_b64 s[50:51], vcc")
        I("ds_write_b128 v%d, %s" % (T1, vr(ACC, 4)))
        I("ds_write_b128 v%d, %s offset:16" % (T1, vr(ACC + 4, 4)))
        I("s_mov_b64 exec, s[50:51]")
        em.wait_all_lg()
        em.barrier()
        l2 = newlab("modw")
        I("s_cmp_lg_u32 s32, 0")
        I("s_cbranch_scc1 " + l2)
        I("v_lshlrev_b32 v%d, 2, v%d" % (T1, L))
        I("v_add_u32 v%d, %d, v%d" % (T0, scratch, T1))
        for w in range(8): I("ds_read_b32 v%d, v%d offset:%d" % (Cv + w, T0, 256 * w))
        for w in range(1, 8): I("v_add_f32 v%d, v%d, v%d" % (Cv, Cv, Cv + w))
        round_bf16_one(em, Cv, T0)
        I("s_lshl_b32 s50, s2, 8"); I("s_add_u32 s50, s50, %d" % WS_MOD)
        I("buffer_store_dword v%d, v%d, s[%d:%d], s50 offen sc1" % (Cv, T1, S_WS, S_WS + 3))
        l3 = newlab("nonce")
        I("s_cmp_lg_u32 s2, 0")
        I("s_cbranch_scc1 " + l3)
        I("s_memrealtime s[52:53]")
        em.wait_all_lg()
        I("s_or_b32 s53, s53, 0x40000000")
        I("v_mov_b32 v%d, s52" % (Cv + 2)); I("v_mov_b32 v%d, s53" % (Cv + 3)); I("v_mov_b32 v%d, 0" % T0)
        I("buffer_store_dwordx2 %s, v%d, s[%d:%d], 0 offen offset:8 sc1" % (vr(Cv + 2, 2), T0, S_DBG, S_DBG + 3))
        em.label(l3)
        em.raw("s_waitcnt vmcnt(0)")
        I("v_mov_b32 v%d, 1" % T1); I("v_mov_b32 v%d, 0" % T0)
        I("v_cmp_eq_u32 vcc, 0, v%d" % L)
        I("s_and_saveexec_b64 s[50:51], vcc")
        I("buffer_atomic_add v%d, v%d, s[%d:%d], 0 offen" % (T1, T0, S_DBG, S_DBG + 3))
        I("s_mov_b64 exec, s[50:51]")
        em.label(l2)
        em.raw("s_waitcnt vmcnt(0) lgkmcnt(0)")

def poll_mod(em, L, scratch, T):
    I = em.I
    lab = newlab("pm"); lp = newlab("pml"); done = newlab("pmd")
    I("s_cmp_lg_u32 s32, 0")
    I("s_cbranch_scc1 " + lab)
    with Cond(em, lab):
        I("v_mov_b32 v%d, 0" % T)
        I("s_mov_b32 s50, 0")
        em.label(lp)
        em.raw("buffer_load_dwordx4 %s, v%d, s[%d:%d], 0 offen sc1" % (vr(T + 2, 4), T, S_DBG, S_DBG + 3))
        em.raw("s_waitcnt vmcnt(0)")
        em.raw("v_readfirstlane_b32 s51, v%d" % (T + 2))
        em.raw("s_add_u32 s50, s50, 1")
        em.raw("s_cmp_ge_u32 s51, 54")
        em.raw("s_cbranch_scc1 " + done)
        em.raw("s_cmp_ge_u32 s50, %d" % SPIN_LIMIT)
        em.raw("s_cbranch_scc1 " + done)
        em.raw("s_sleep 1")
        em.raw("s_branch " + lp)
        em.label(done)
        I("v_mov_b32 v%d, %d" % (T, scratch))
        I("ds_write_b64 v%d, %s" % (T, vr(T + 4, 2)))
        em.raw("s_waitcnt lgkmcnt(0)")
    em.barrier()
    I("v_mov_b32 v%d, %d" % (T, scratch))
    I("ds_read_b64 %s, v%d" % (vr(T + 2, 2), T))
    I("v_readfirstlane_b32 s%d, v%d" % (S_NONCE, T + 2))
    I("v_readfirstlane_b32 s%d, v%d" % (S_NONCE + 1, T + 3))

def publish(em, L, k, T):
    I = em.I
    em.raw("s_waitcnt vmcnt(0)"); em.vm_done = em.vm_iss
    em.barrier()
    lab = newlab("pub")
    I("s_cmp_lg_u32 s32, 0")
    I("s_cbranch_scc1 " + lab)
    with Cond(em, lab):
        I("s_lshl_b32 s50, s%d, 3" % S_B8); I("s_add_u32 s50, s50, %d" % (WS_FLAG + k * 2048))
        I("v_mov_b32 v%d, s%d" % (T + 2, S_NONCE)); I("v_mov_b32 v%d, s%d" % (T + 3, S_NONCE + 1)); I("v_mov_b32 v%d, 0" % T)
        I("v_cmp_eq_u32 vcc, 0, v%d" % L)
        I("s_and_saveexec_b64 s[4:5], vcc")
        I("buffer_store_dwordx2 %s, v%d, s[%d:%d], s50 offen sc1" % (vr(T + 2, 2), T, S_WS, S_WS + 3))
        I("s_mov_b64 exec, s[4:5]")

def poll_team(em, L, k, T):
    I = em.I
    lab = newlab("pt"); lp = newlab("ptl"); done = newlab("ptd")
    I("s_cmp_lg_u32 s32, 0")
    I("s_cbranch_scc1 " + lab)
    with Cond(em, lab):
        I("v_and_b32 v%d, 15, v%d" % (T, L))
        I("v_lshlrev_b32 v%d, 3, v%d" % (T, T))
        I("s_lshl_b32 s51, s34, 7"); I("s_add_u32 s51, s51, %d" % (WS_FLAG + k * 2048))
        I("s_mov_b32 s50, 0")
        em.label(lp)
        em.raw("buffer_load_dwordx2 %s, v%d, s[%d:%d], s51 offen sc1" % (vr(T + 2, 2), T, S_WS, S_WS + 3))
        em.raw("s_waitcnt vmcnt(0)")
        em.raw("v_cmp_ne_u64 vcc, s[%d:%d], %s" % (S_NONCE, S_NONCE + 1, vr(T + 2, 2)))
        em.raw("s_add_u32 s50, s50, 1")
        em.raw("s_cbranch_vccz " + done)
        em.raw("s_cmp_ge_u32 s50, %d" % SPIN_LIMIT)
        em.raw("s_cbranch_scc1 " + done)
        em.raw("s_sleep 1")
        em.raw("s_branch " + lp)
        em.label(done)
    em.barrier()

class LN:
    FO, XO, CO = 16, 17, 18
    X = (20, 24); G = (28, 36); CA = (44, 52); SA = (60, 68); XV = (76, 84); Z = (92, 100)
    PB = (112, 176); SEL = 240; T = 246
    def __init__(self, em, L, mode, scratch, pbase=None):
        self.em = em; self.L = L; self.mode = mode; self.scr = scratch; self.pbase = pbase
    def both(self, fn, vm=False):
        fn(0)
        self.optB(lambda: fn(1))
    def optB(self, fn):
        em = self.em
        lab = newlab("itb")
        em.I("s_cmp_lg_u32 s32, 0"); em.I("s_cbranch_scc1 " + lab)
        pos = em.pos; sv = (em.vm_done, em.lg_done, dict(em.pend))
        fn()
        em.label(lab); em.skip_adjust(pos)
        em.vm_done, em.lg_done, em.pend = sv
    def addr(self):
        em = self.em; I = em.I; L = self.L; T = self.T
        I("v_and_b32 v%d, 7, v%d" % (T, L))
        I("v_bfe_u32 v%d, v%d, 3, 2" % (T + 1, L))
        I("v_lshrrev_b32 v%d, 5, v%d" % (T + 2, L))
        I("s_lshl_b32 s50, s32, 1")
        I("v_add_u32 v%d, s50, v%d" % (T + 2, T + 2))
        I("s_lshr_b32 s50, s%d, 2" % S_B8); I("s_mul_i32 s50, s50, 36864")
        I("s_bfe_u32 s51, s%d, 0x10001" % S_B8); I("s_lshl_b32 s51, s51, 10"); I("s_add_u32 s50, s50, s51")
        I("s_and_b32 s51, s%d, 1" % S_B8); I("s_lshl_b32 s51, s51, 7"); I("s_add_u32 s50, s50, s51")
        I("v_lshlrev_b32 v%d, 11, v%d" % (self.FO, T + 2))
        I("v_lshl_add_u32 v%d, v%d, 8, v%d" % (self.FO, T + 1, self.FO))
        I("v_lshl_add_u32 v%d, v%d, 4, v%d" % (self.FO, T, self.FO))
        I("v_add_u32 v%d, s50, v%d" % (self.FO, self.FO))
        I("s_mul_i32 s50, s%d, 9216" % S_B8)
        I("v_mul_u32_u24 v%d, 1152, v%d" % (self.XO, T))
        I("v_lshl_add_u32 v%d, v%d, 6, v%d" % (self.XO, T + 2, self.XO))
        I("v_lshl_add_u32 v%d, v%d, 3, v%d" % (self.XO, T + 1, self.XO))
        I("v_add_u32 v%d, s50, v%d" % (self.XO, self.XO))
        I("v_lshlrev_b32 v%d, 7, v%d" % (self.CO, T + 2))
        I("v_lshl_add_u32 v%d, v%d, 4, v%d" % (self.CO, T + 1, self.CO))
    def _ld(self, it, text):
        if it == 1: opt_vm(self.em, text)
        else: self.em.I(text)
    def load_x(self):
        em = self.em
        def f(it):
            if self.mode == "fin":
                em.I("s_mov_b32 s50, 0x%x" % (WS_X1 + it * 32768))
                self._ld(it, "buffer_load_dwordx4 %s, v%d, s[%d:%d], s50 offen sc1" % (vr(self.X[it], 4), self.FO, S_WS, S_WS + 3))
            else:
                for h in range(2):
                    self._ld(it, "buffer_load_dwordx2 %s, v%d, s[%d:%d], 0 offen offset:%d" % (vr(self.X[it] + 2 * h, 2), self.XO, S_X, S_X + 3, 1024 * it + 32 * h))
        self.optB(lambda: f(1)); f(0)
    def load_mod(self, which):
        em = self.em
        def f(it):
            for dst, idx in which:
                em.I("s_mov_b32 s50, %d" % (WS_MOD + idx * 2304))
                for h in range(2):
                    self._ld(it, "buffer_load_dwordx4 %s, v%d, s[%d:%d], s50 offen offset:%d sc1" % (vr(dst[it] + 4 * h, 4), self.CO, S_WS, S_WS + 3, 2048 * it + 64 * h))
        self.optB(lambda: f(1)); f(0)
    def load_p(self):
        em = self.em
        def f(it):
            for p in range(16):
                s = 56 + p % 8
                em.I("s_mov_b32 s%d, 0x%x" % (s, self.pbase + p * FRAG + it * 32768))
                self._ld(it, "buffer_load_dwordx4 %s, v%d, s[%d:%d], s%d offen sc1" % (vr(self.PB[it] + 4 * p, 4), self.FO, S_WS, S_WS + 3, s))
        self.optB(lambda: f(1)); f(0)
    def sel(self):
        em = self.em; I = em.I; L = self.L; T = self.T; S = self.SEL
        I("v_bfe_u32 v%d, v%d, 2, 2" % (T, L)); I("v_lshrrev_b32 v%d, 4, v%d" % (T + 1, L))
        I("v_and_b32 v%d, 1, v%d" % (T + 2, L)); I("v_lshlrev_b32 v%d, 4, v%d" % (T + 2, T + 2))
        I("v_mov_b32 v%d, 0x3f80" % (T + 3)); I("v_lshlrev_b32 v%d, v%d, v%d" % (T + 3, T + 2, T + 3))
        I("v_cmp_eq_u32 vcc, v%d, v%d" % (T, T + 1))
        I("v_cndmask_b32 v%d, 0, v%d, vcc" % (T + 3, T + 3))
        I("v_bfe_u32 v%d, v%d, 1, 1" % (T + 2, L))
        I("v_cmp_eq_u32 vcc, 0, v%d" % (T + 2))
        I("v_cndmask_b32 v%d, 0, v%d, vcc" % (S + 2, T + 3))
        I("v_sub_u32 v%d, v%d, v%d" % (S + 3, T + 3, S + 2))
        for r in (0, 1, 4, 5): I("v_mov_b32 v%d, 0" % (S + r))
    def unpack_x(self, it):
        I = self.em.I
        for d in range(4):
            I("v_lshlrev_b32 v%d, 16, v%d" % (self.XV[it] + 2 * d, self.X[it] + d))
            I("v_and_b32 v%d, 0xffff0000, v%d" % (self.XV[it] + 2 * d + 1, self.X[it] + d))
    def residual(self):
        em = self.em; I = em.I; T = self.T; S = self.SEL
        def f(it):
            Z, XV, G, PB = self.Z[it], self.XV[it], self.G[it], self.PB[it]
            for p in range(16):
                I("v_mfma_f32_16x16x32_bf16 %s, %s, %s, %s" % (vr(Z, 4), vr(S + 2, 4), vr(PB + 4 * p, 4), "0" if p == 0 else vr(Z, 4)))
                I("v_mfma_f32_16x16x32_bf16 %s, %s, %s, %s" % (vr(Z + 4, 4), vr(S, 4), vr(PB + 4 * p, 4), "0" if p == 0 else vr(Z + 4, 4)))
            self.unpack_x(it)
            for d in range(4): round_bf16_pair(em, Z + 2 * d, Z + 2 * d + 1, T)
            for e in range(8): I("v_mul_f32 v%d, v%d, v%d" % (Z + e, Z + e, G + e))
            for d in range(4): round_bf16_pair(em, Z + 2 * d, Z + 2 * d + 1, T)
            for e in range(8): I("v_add_f32 v%d, v%d, v%d" % (XV + e, XV + e, Z + e))
            for d in range(4): I("v_cvt_pk_bf16_f32 v%d, v%d, v%d" % (self.X[it] + d, XV + 2 * d, XV + 2 * d + 1))
            if self.mode == "fin":
                for h in range(2):
                    self._ld(it, "buffer_store_dwordx2 %s, v%d, s[%d:%d], 0 offen offset:%d" % (vr(self.X[it] + 2 * h, 2), self.XO, S_OUT, S_OUT + 3, 1024 * it + 32 * h))
            else:
                I("s_mov_b32 s50, 0x%x" % (WS_X1 + it * 32768))
                self._ld(it, "buffer_store_dwordx4 %s, v%d, s[%d:%d], s50 offen sc1" % (vr(self.X[it], 4), self.FO, S_WS, S_WS + 3))
        self.both(f)
    def stats(self):
        em = self.em; I = em.I; T = self.T; L = self.L
        S, M, WA, RA = T + 6, T + 7, T + 8, T + 9
        RB = self.Z[0]
        I("v_and_b32 v%d, 7, v%d" % (RA, L)); I("v_lshlrev_b32 v%d, 5, v%d" % (RA, RA))
        I("v_add_u32 v%d, %d, v%d" % (RA, self.scr, RA))
        I("s_lshl_b32 s50, s32, 2")
        I("v_add_u32 v%d, s50, v%d" % (WA, RA))
        def row_reduce(off):
            wave_reduce_8_16_32(em, S, T)
            I("v_cmp_gt_u32 vcc, 8, v%d" % L)
            I("s_and_saveexec_b64 s[50:51], vcc")
            I("ds_write_b32 v%d, v%d offset:%d" % (WA, S, off))
            I("s_mov_b64 exec, s[50:51]")
            em.wait_all_lg()
            em.barrier()
            I("ds_read_b128 %s, v%d offset:%d" % (vr(RB, 4), RA, off))
            I("ds_read_b128 %s, v%d offset:%d" % (vr(RB + 4, 4), RA, off + 16))
            I("v_add_f32 v%d, v%d, v%d" % (S, RB, RB + 1))
            for i in range(2, 8): I("v_add_f32 v%d, v%d, v%d" % (S, S, RB + i))
        def s1(it):
            self.unpack_x(it); XV = self.XV[it]
            if it == 0: I("v_add_f32 v%d, v%d, v%d" % (S, XV, XV + 1))
            for e in range(2 if it == 0 else 0, 8): I("v_add_f32 v%d, v%d, v%d" % (S, S, XV + e))
        self.both(s1)
        row_reduce(0)
        I("v_mul_f32 v%d, %s, v%d" % (M, f32(1.0 / 576), S))
        def s2(it):
            XV = self.XV[it]
            for e in range(8):
                I("v_sub_f32 v%d, v%d, v%d" % (T + 2, XV + e, M))
                if it == 0 and e == 0: I("v_mul_f32 v%d, v%d, v%d" % (S, T + 2, T + 2))
                else: I("v_fmac_f32 v%d, v%d, v%d" % (S, T + 2, T + 2))
        self.both(s2)
        row_reduce(256)
        I("v_mul_f32 v%d, %s, v%d" % (S, f32(1.0 / 576), S))
        round_bf16_pair(em, S, M, T)
        I("v_add_f32 v%d, %s, v%d" % (S, f32(1e-5), S))
        round_bf16_one(em, S, T)
        I("v_sqrt_f32 v%d, v%d" % (S, S))
        round_bf16_one(em, S, T)
        I("v_rcp_f32 v%d, v%d" % (S, S))
        def s3(it):
            XV = self.XV[it]
            for e in range(8): I("v_sub_f32 v%d, v%d, v%d" % (XV + e, XV + e, M))
            for d in range(4): round_bf16_pair(em, XV + 2 * d, XV + 2 * d + 1, T)
            for e in range(8): I("v_mul_f32 v%d, v%d, v%d" % (XV + e, XV + e, S))
            for d in range(4): round_bf16_pair(em, XV + 2 * d, XV + 2 * d + 1, T)
        self.both(s3)
    def affine_store(self, dst):
        em = self.em; I = em.I; T = self.T
        def f(it):
            XV, CA, SA = self.XV[it], self.CA[it], self.SA[it]
            for e in range(8): I("v_add_f32 v%d, 1.0, v%d" % (CA + e, CA + e))
            for d in range(4): round_bf16_pair(em, CA + 2 * d, CA + 2 * d + 1, T)
            for e in range(8): I("v_mul_f32 v%d, v%d, v%d" % (XV + e, XV + e, CA + e))
            for d in range(4): round_bf16_pair(em, XV + 2 * d, XV + 2 * d + 1, T)
            for e in range(8): I("v_add_f32 v%d, v%d, v%d" % (XV + e, XV + e, SA + e))
            for d in range(4): I("v_cvt_pk_bf16_f32 v%d, v%d, v%d" % (CA + d, XV + 2 * d, XV + 2 * d + 1))
            I("s_mov_b32 s50, 0x%x" % (dst + it * 32768))
            self._ld(it, "buffer_store_dwordx4 %s, v%d, s[%d:%d], s50 offen sc1" % (vr(CA, 4), self.FO, S_WS, S_WS + 3))
        self.both(f)

class Ctx: pass

class RT:
    def __init__(self, em): self.em = em; self.n = 0; self.names = []
    def first(self): self.em.I("s_memrealtime s[64:65]")
    def commit_first(self): self.em.wait_all_lg()
    def __call__(self, name=""):
        if name.startswith("pre") and name not in ("pre9", "pre17", "pre22"): return
        if self.n >= 12: return
        em = self.em
        em.I("s_memrealtime s[66:67]"); em.wait_all_lg()
        em.I("s_sub_u32 s66, s66, s64")
        em.I("v_writelane_b32 v0, s66, %d" % self.n); self.n += 1; self.names.append(name)
    def finish(self, HOFF):
        em = self.em; I = em.I
        self.n = min(self.n, 11); self("end")
        lab = newlab("rt")
        I("s_cmp_lg_u32 s2, 100"); I("s_cbranch_scc1 " + lab)
        I("s_cmp_lg_u32 s32, 0"); I("s_cbranch_scc1 " + lab)
        I("v_lshrrev_b32 v2, 2, v%d" % HOFF)
        I("v_cmp_gt_u32 vcc, 48, v2")
        I("s_and_saveexec_b64 s[4:5], vcc")
        I("buffer_store_dword v0, v2, s[%d:%d], 0 offen offset:16" % (S_DBG, S_DBG + 3))
        em.label(lab)
        print("RT stamps:", self.names)

def gen_mega(name):
    em = Emit(name); I = em.I
    gen2.STMOD = " sc1"
    L = 7; SCR = 19 * UNIT
    I("s_cmp_ge_u32 s2, 256")
    I("s_cbranch_scc1 L_mega_end")
    st = Stamper(em, 0) if not DBGSTAMP else RT(em)
    st.first()
    setup_global(em)
    I("v_and_b32 v%d, 63, v0" % L)
    st.commit_first()
    ctx = Ctx(); ctx.em = em; ctx.st = st; ctx.p2 = WS_P2; ctx.top = WS_TOP
    T = LN.T
    ln1 = LN(em, L, "ln1", SCR)
    ln1.addr(); ln1.load_x()
    mod_block(em, L, 18 * UNIT)
    st("mod done") if not DBGSTAMP else None
    def front(setup_rest):
        ln1.stats()
        setup_rest()
        st("stats done") if not DBGSTAMP else None
        poll_mod(em, L, SCR + 1024, T)
        st("mod seen")
        ln1.load_mod([(LN.CA, 1), (LN.SA, 0)])
        ln1.affine_store(WS_H)
        publish(em, L, 0, T)
        st("h published") if not DBGSTAMP else None
        poll_team(em, L, 0, T)
        st("h seen")
    ctx.front = front
    tail = gen3.gen_attn(ctx)
    em.raw("s_setprio 0")
    st("attn done")
    publish(em, L, 1, T)
    st("P1 published") if not DBGSTAMP else None
    ln2 = LN(em, L, "ln2", SCR, pbase=WS_P)
    def mid(setup_rest):
        ln2.addr(); ln2.load_x(); ln2.load_mod([(LN.G, 2), (LN.CA, 4), (LN.SA, 3)]); ln2.sel()
        poll_team(em, L, 1, T)
        st("P1 seen")
        ln2.load_p()
        ln2.residual()
        st("reduced")
        ln2.stats()
        ln2.affine_store(WS_H2)
        publish(em, L, 2, T)
        st("h2 published") if not DBGSTAMP else None
        setup_rest()
        poll_team(em, L, 2, T)
        st("h2 seen")
    ctx.mid = mid
    gen3.gen_ffn(ctx)
    em.raw("s_setprio 0")
    st("ffn done")
    publish(em, L, 3, T)
    fin = LN(em, L, "fin", SCR, pbase=WS_P2)
    fin.addr(); fin.load_x(); fin.load_mod([(LN.G, 5)]); fin.sel()
    poll_team(em, L, 3, T)
    st("P2 seen")
    fin.load_p()
    fin.residual()
    load_ptr(em, 48, "ws")
    st.finish(1)
    em.raw("s_endpgm")
    tail()
    em.label("L_mega_end")
    em.raw("s_endpgm")
    return em, "grid=(256,1,1) block=(512,1,1) lds=163840"
```
